```python
import torch

def _softmax(x, axis=-1):
    return torch.softmax(x, dim=axis)
def _gelu(x):
    return torch.nn.functional.gelu(x, approximate="tanh")
def _silu(x):
    return torch.nn.functional.silu(x)
def _sigmoid(x):
    return torch.sigmoid(x)
def _layernorm(x, axis=-1, eps=1e-5):
    m = x.mean(dim=axis, keepdim=True)
    v = x.var(dim=axis, keepdim=True, unbiased=False)
    return (x - m) / torch.sqrt(v + eps)
def _scatter_add(tgt, idx, src, axis=0):
    return tgt.clone().index_add_(axis, idx, src)
def _segment_sum(src, seg, n):
    out = torch.zeros((n,) + src.shape[1:], dtype=src.dtype)
    return out.index_add_(0, seg, src)
def _pad(x, pw):
    flat = tuple(v for pair in reversed(pw) for v in pair)
    return torch.nn.functional.pad(x, flat)

kernel_name = 'gather_scatter__cheap_equivariant_egnn__graph'

def setup_inputs():

    _w = (lambda a: (lambda t: t.to(torch.bfloat16) if t.is_floating_point() else t)(torch.as_tensor(a)))
    N, deg, D, De = 10000, 16, 256, max(0, 1)
    E = N * deg
    return {
        "h": _w((lambda *s: torch.randn(*s, dtype=torch.bfloat16) * 0.2)(N, D)),
        "pos": _w((lambda *s: torch.randn(*s, dtype=torch.bfloat16) * 0.8)(N, 3)),
        "e_attr": _w((lambda *s: torch.randn(*s, dtype=torch.bfloat16) * 0.8)(E, De)),
        "src": _w((lambda lo, hi, *s: torch.randint(lo, hi, s))(0, N, E).to(torch.int64)),
        "dst": _w((lambda lo, hi, *s: torch.randint(lo, hi, s))(0, N, E).to(torch.int64)),
        "w_e": _w(0.1 * (lambda *s: torch.randn(*s, dtype=torch.bfloat16) * 0.8)(2 * D + 1 + De, D)),
        "w_x": _w(0.1 * (lambda *s: torch.randn(*s, dtype=torch.bfloat16) * 0.2)(D, 1)),
        "w_h": _w(0.1 * (lambda *s: torch.randn(*s, dtype=torch.bfloat16) * 0.2)(2 * D, D)),
    }

def reference(h, pos, e_attr, src, dst, w_e, w_x, w_h):
    N, D = h.shape[0], h.shape[1]
    diff = pos[dst] - pos[src]
    dist2 = torch.sum(diff * diff, axis=-1, keepdims=True)
    e_in = torch.concatenate([h[dst], h[src], dist2, e_attr], axis=-1)
    m_ij = _silu(e_in @ w_e)
    coord_scale = m_ij @ w_x
    pos_new = pos + _segment_sum(diff * coord_scale, dst, N)
    m_i = _segment_sum(m_ij, dst, N)
    h_new = h + _silu(torch.concatenate([h, m_i], axis=-1) @ w_h)
    return h_new, pos_new
```

```python
from gen import WS_A, WS_B, WS_REC, WS_OFF, WS_WHF, WS_END, NEG_LOG2E, NEG_LN2, srd

L_MISC = 0; L_ACC = 4096; L_AROW = 45056; L_SORT = 86016
L_HIST = L_MISC; L_START = L_MISC + 256; L_LAST = L_MISC + 512; L_POSACC = L_MISC + 768
L_POSCARRY = L_MISC + 1408; L_TOTAL = L_MISC + 2432; L_FLAG = L_MISC + 2436
L_CARRY = L_AROW
K2_LDS = L_SORT + 65536
K2_VGPR = 128
CAP = 2048

vTid, vQ16, vIdx, vHi, vCur, vPosAcc, vRecA, vDOff, vNW0 = 0, 1, 2, 3, 4, 5, 6, 7, 8
vT0, vT1, vT2 = 9, 10, 11
vR = 12
vD = 16; vDot = 17; vT3 = 18; vT4 = 19
vACC = 20; vW512 = 36; vW513 = 52; vWX = 68; vAt = 84
vB = [100, 108]
vTmp = 116
sWS, sH, sOUT, sPOS, sWE, sWX = 24, 28, 32, 36, 40, 44

def gen_k2(a):
    a.raw(".globl k2_kernel")
    a.raw(".p2align 8")
    a.raw(".type k2_kernel,@function")
    a.label("k2_kernel")
    a("s_cmp_ge_u32 s2, 250")
    a("s_cbranch_scc1 k2_end")
    a("s_load_dwordx4 s[4:7], s[0:1], 0")
    a("s_load_dwordx2 s[14:15], s[0:1], 40")
    a("s_load_dwordx2 s[16:17], s[0:1], 48")
    a("s_load_dwordx2 s[22:23], s[0:1], 64")
    a("s_load_dwordx2 s[20:21], s[0:1], 80")
    a(f"v_and_b32 v{vQ16}, 15, v0")
    a(f"v_lshlrev_b32 v{vQ16}, 4, v{vQ16}")
    a("v_lshrrev_b32 v9, 6, v0")
    a("s_nop 0")
    a("v_readfirstlane_b32 s3, v9")
    a("s_waitcnt lgkmcnt(0)")
    srd(a, sWS, 20, WS_END)
    srd(a, sH, 4, 5120000)
    srd(a, sOUT, 22, 5180000)
    srd(a, sPOS, 6, 60000)
    srd(a, sWE, 14, 263168)
    srd(a, sWX, 16, 512)
    a("s_mul_i32 s48, s2, 40960")
    for r in range(4):
        a(f"v_mov_b32 v{20+r}, 0")
    a("v_lshlrev_b32 v9, 4, v0")
    a(f"ds_write_b128 v9, v[20:23] offset:{L_ACC}")
    a(f"ds_write_b128 v9, v[20:23] offset:{L_ACC+16384}")
    a("v_cmp_gt_u32 vcc, 512, v0")
    a("s_and_saveexec_b64 s[50:51], vcc")
    a(f"ds_write_b128 v9, v[20:23] offset:{L_ACC+32768}")
    a("s_mov_b64 exec, s[50:51]")
    a("v_lshlrev_b32 v10, 2, v0")
    a("v_cmp_gt_u32 vcc, 640, v0")
    a("s_and_saveexec_b64 s[50:51], vcc")
    a(f"ds_write_b32 v10, v20 offset:{L_MISC}")
    a("s_mov_b64 exec, s[50:51]")
    a("v_mov_b32 v19, 0")
    a.label("k2_round0")
    a("v_mov_b32 v24, 0")
    a("v_mov_b32 v25, 0")
    a("v_lshlrev_b32 v10, 10, v0")
    a("s_lshl_b32 s49, s2, 2")
    a(f"s_add_u32 s49, s49, {WS_OFF}")
    a("v_cmp_gt_u32 vcc, 1000, v0")
    a("s_and_saveexec_b64 s[50:51], vcc")
    a(f"buffer_load_dwordx2 v[24:25], v10, s[{sWS}:{sWS+3}], s49 offen")
    a("s_mov_b64 exec, s[50:51]")
    a(f"s_mov_b32 s49, {512*512}")
    a(f"buffer_load_dwordx4 v[100:103], v{vQ16}, s[{sWE}:{sWE+3}], s49 offen")
    a(f"buffer_load_dwordx4 v[104:107], v{vQ16}, s[{sWE}:{sWE+3}], s49 offen offset:256")
    a(f"buffer_load_dwordx4 v[108:111], v{vQ16}, s[{sWE}:{sWE+3}], s49 offen offset:512")
    a(f"buffer_load_dwordx4 v[112:115], v{vQ16}, s[{sWE}:{sWE+3}], s49 offen offset:768")
    a(f"buffer_load_dwordx4 v[116:119], v{vQ16}, s[{sWX}:{sWX+3}], 0 offen")
    a(f"buffer_load_dwordx4 v[120:123], v{vQ16}, s[{sWX}:{sWX+3}], 0 offen offset:256")
    a("v_mul_u32_u24 v26, 5120, v0")
    a.label("k2_round")
    a(f"buffer_load_dwordx4 v[28:31], v9, s[{sWS}:{sWS+3}], s48 offen")
    a(f"buffer_load_dwordx4 v[32:35], v9, s[{sWS}:{sWS+3}], s48 offen offset:0")
    a.lines.pop()
    a(f"s_add_u32 s49, s48, 16384")
    a(f"buffer_load_dwordx4 v[32:35], v9, s[{sWS}:{sWS+3}], s49 offen")
    a(f"s_add_u32 s49, s48, 32768")
    a("v_cmp_gt_u32 vcc, 512, v0")
    a("s_and_saveexec_b64 s[50:51], vcc")
    a(f"buffer_load_dwordx4 v[36:39], v9, s[{sWS}:{sWS+3}], s49 offen")
    a("s_mov_b64 exec, s[50:51]")
    a("s_waitcnt vmcnt(0)")
    a(f"v_add_u32 v10, {L_AROW}, v9")
    a(f"ds_write_b128 v10, v[28:31]")
    a(f"ds_write_b128 v10, v[32:35] offset:16384")
    a("v_cmp_gt_u32 vcc, 512, v0")
    a("s_and_saveexec_b64 s[50:51], vcc")
    a(f"ds_write_b128 v10, v[36:39] offset:32768")
    a("s_mov_b64 exec, s[50:51]")
    a("v_add_u32 v24, v24, v19")
    a("v_sub_u32 v27, v25, v24")
    a("v_min_u32 v28, 8, v27")
    a("s_waitcnt lgkmcnt(0)")
    a("s_barrier")
    a(f"v_mov_b32 v29, {L_TOTAL}")
    a("ds_add_rtn_u32 v30, v29, v28")
    a("s_waitcnt lgkmcnt(0)")
    a("v_add_u32 v31, v30, v28")
    a(f"v_cmp_lt_u32 vcc, {CAP}, v31")
    a("s_and_saveexec_b64 s[50:51], vcc")
    a("s_cbranch_execz k2_nocap")
    a("ds_sub_u32 v29, v28")
    a("v_mov_b32 v28, 0")
    a.label("k2_nocap")
    a("s_mov_b64 exec, s[50:51]")
    a("v_cmp_lt_u32 vcc, v28, v27")
    a("s_and_saveexec_b64 s[50:51], vcc")
    a("s_cbranch_execz k2_noflag")
    a(f"v_mov_b32 v29, {L_FLAG}")
    a("v_mov_b32 v30, 1")
    a("ds_write_b32 v29, v30")
    a.label("k2_noflag")
    a("s_mov_b64 exec, s[50:51]")
    a("v_lshlrev_b32 v29, 5, v24")
    a("v_add_u32 v29, v29, v26")
    a(f"s_mov_b32 s49, {WS_REC}")
    for r in range(8):
        R = 32 + 8 * r
        a(f"v_cmp_lt_u32 vcc, {r}, v28")
        a("s_and_saveexec_b64 s[50:51], vcc")
        a(f"buffer_load_dwordx4 v[{R}:{R+3}], v29, s[{sWS}:{sWS+3}], s49 offen offset:{r*32}")
        a(f"buffer_load_dwordx4 v[{R+4}:{R+7}], v29, s[{sWS}:{sWS+3}], s49 offen offset:{r*32+16}")
        a("s_mov_b64 exec, s[50:51]")
    a("v_add_u32 v19, v19, v28")
    a("v_mov_b32 v30, 1")
    a("s_waitcnt vmcnt(0)")
    for r in range(8):
        R = 32 + 8 * r
        a(f"v_cmp_lt_u32 vcc, {r}, v28")
        a("s_and_saveexec_b64 s[50:51], vcc")
        a(f"v_lshrrev_b32 v29, 8, v{R+3}")
        a(f"ds_add_rtn_u32 v{R+7}, v29, v30 offset:{L_HIST}")
        a("s_mov_b64 exec, s[50:51]")
    a("s_waitcnt lgkmcnt(0)")
    a("s_barrier")
    a("s_cmp_lg_u32 s3, 0")
    a("s_cbranch_scc1 k2_scan_done")
    a("v_lshlrev_b32 v29, 2, v0")
    a(f"ds_read_b32 v30, v29 offset:{L_HIST}")
    a("s_waitcnt lgkmcnt(0)")
    a("v_mov_b32 v31, v30")
    for sh in (1, 2, 4, 8):
        a("s_nop 1")
        a(f"v_add_u32_dpp v31, v31, v31 row_shr:{sh} row_mask:0xf bank_mask:0xf bound_ctrl:0")
    a("s_nop 1")
    a("v_add_u32_dpp v31, v31, v31 row_bcast:15 row_mask:0xa bank_mask:0xf")
    a("s_nop 1")
    a("v_add_u32_dpp v31, v31, v31 row_bcast:31 row_mask:0xc bank_mask:0xf")
    a("v_sub_u32 v31, v31, v30")
    a(f"ds_write_b32 v29, v31 offset:{L_START}")
    a("s_waitcnt lgkmcnt(0)")
    a.label("k2_scan_done")
    a("s_barrier")
    a(f"v_mov_b32 v31, {L_SORT}")
    for r in range(8):
        R = 32 + 8 * r
        a(f"v_cmp_lt_u32 vcc, {r}, v28")
        a("s_and_saveexec_b64 s[50:51], vcc")
        a(f"v_lshrrev_b32 v29, 8, v{R+3}")
        a(f"ds_read_b32 v30, v29 offset:{L_START}")
        a("s_waitcnt lgkmcnt(0)")
        a(f"v_add_u32 v30, v30, v{R+7}")
        a(f"v_lshl_add_u32 v30, v30, 5, v31")
        a(f"ds_write_b128 v30, v[{R}:{R+3}]")
        a(f"ds_write_b128 v30, v[{R+4}:{R+7}] offset:16")
        a("s_mov_b64 exec, s[50:51]")
    a(f"v_mov_b32 v29, {L_START+40*4}")
    a("ds_read_b32 v30, v29")
    a("s_waitcnt lgkmcnt(0)")
    a("v_readfirstlane_b32 s52, v30")
    a("s_barrier")
    for k in range(8):
        a(f"v_lshlrev_b32 v{vW512+2*k}, 16, v{100+k}")
        a(f"v_and_b32 v{vW512+2*k+1}, 0xffff0000, v{100+k}")
        a(f"v_lshlrev_b32 v{vW513+2*k}, 16, v{108+k}")
        a(f"v_and_b32 v{vW513+2*k+1}, 0xffff0000, v{108+k}")
    for k in range(8):
        a(f"v_lshlrev_b32 v{vWX+2*k}, 16, v{116+k}")
        a(f"v_and_b32 v{vWX+2*k+1}, 0xffff0000, v{116+k}")
    for i in range(16):
        a(f"v_mul_f32 v{vW512+i}, 0x{NEG_LOG2E:08x}, v{vW512+i}")
        a(f"v_mul_f32 v{vW513+i}, 0x{NEG_LOG2E:08x}, v{vW513+i}")
    a("s_add_u32 s53, s52, 63")
    a("s_lshr_b32 s53, s53, 6")
    a("v_lshrrev_b32 v9, 4, v0")
    a(f"v_mul_u32_u24 v{vIdx}, s53, v9")
    a(f"v_min_u32 v{vIdx}, s52, v{vIdx}")
    a(f"v_add_u32 v{vHi}, s53, v{vIdx}")
    a(f"v_min_u32 v{vHi}, s52, v{vHi}")
    a(f"v_lshlrev_b32 v{vRecA}, 5, v{vIdx}")
    a(f"v_add_u32 v{vRecA}, {L_SORT}, v{vRecA}")
    a(f"v_lshrrev_b32 v{vDOff}, 4, v{vQ16}")
    a(f"v_min_u32 v{vDOff}, 3, v{vDOff}")
    a(f"v_lshlrev_b32 v{vDOff}, 2, v{vDOff}")
    a(f"v_add_u32 v{vDOff}, 16, v{vDOff}")
    for i in range(16):
        a(f"v_mov_b32 v{vACC+i}, 0")
    a(f"v_mov_b32 v{vPosAcc}, 0")
    a(f"ds_read_b128 v[{vR}:{vR+3}], v{vRecA}")
    a(f"v_add_u32 v{vT0}, v{vRecA}, v{vDOff}")
    a(f"ds_read_b32 v{vD}, v{vT0}")
    a(f"ds_read_b32 v{vNW0}, v{vRecA} offset:32")
    a("s_waitcnt lgkmcnt(0)")
    a(f"v_mov_b32 v{vCur}, v{vR+3}")
    a(f"v_add_u32 v{vT0}, v{vR}, v{vQ16}")
    a(f"s_mov_b32 s54, {WS_B}")
    a(f"buffer_load_dwordx4 v[{vB[0]}:{vB[0]+3}], v{vT0}, s[{sWS}:{sWS+3}], s54 offen")
    a(f"buffer_load_dwordx4 v[{vB[0]+4}:{vB[0]+7}], v{vT0}, s[{sWS}:{sWS+3}], s54 offen offset:256")
    a("s_mov_b32 s55, 0")

    def step(X, cur, nxt):
        a.label(f"k2_step{X}")
        a(f"v_cmp_lt_u32 vcc, v{vIdx}, v{vHi}")
        a("s_mov_b64 exec, vcc")
        a("s_cbranch_execz k2_loop_done")
        a(f"v_cmp_ne_u32 vcc, v{vR+3}, v{vCur}")
        a(f"s_cbranch_vccnz k2_flush{X}")
        a.label(f"k2_back{X}")
        a(f"v_add_u32 v{vT0}, v{vR+3}, v{vQ16}")
        for c in range(4):
            a(f"ds_read_b128 v[{vAt+4*c}:{vAt+4*c+3}], v{vT0} offset:{L_AROW+256*c}")
        a(f"v_add_u32 v{vT1}, v{vNW0}, v{vQ16}")
        a(f"buffer_load_dwordx4 v[{vB[nxt]}:{vB[nxt]+3}], v{vT1}, s[{sWS}:{sWS+3}], s54 offen")
        a(f"buffer_load_dwordx4 v[{vB[nxt]+4}:{vB[nxt]+7}], v{vT1}, s[{sWS}:{sWS+3}], s54 offen offset:256")
        a(f"v_add_u32 v{vIdx}, 1, v{vIdx}")
        a(f"v_add_u32 v{vRecA}, 32, v{vRecA}")
        a(f"v_mov_b32 v{vDot}, 0")
        a("s_waitcnt vmcnt(2) lgkmcnt(0)")
        Bc = vB[cur]
        t = vTmp
        for k in range(8):
            i0, i1 = 2 * k, 2 * k + 1
            u0, u1 = vAt + i0, vAt + i1
            x0, x1 = t + (k % 2) * 6, t + (k % 2) * 6 + 1
            e0, e1 = t + (k % 2) * 6 + 2, t + (k % 2) * 6 + 3
            a(f"v_lshlrev_b32 v{x0}, 16, v{Bc+k}")
            a(f"v_and_b32 v{x1}, 0xffff0000, v{Bc+k}")
            a(f"v_fma_f32 v{u0}, v{vR+1}, v{vW512+i0}, v{u0}")
            a(f"v_fma_f32 v{u1}, v{vR+1}, v{vW512+i1}, v{u1}")
            a(f"v_fma_f32 v{u0}, v{vR+2}, v{vW513+i0}, v{u0}")
            a(f"v_fma_f32 v{u1}, v{vR+2}, v{vW513+i1}, v{u1}")
            a(f"v_add_f32 v{u0}, v{u0}, v{x0}")
            a(f"v_add_f32 v{u1}, v{u1}, v{x1}")
            a(f"v_exp_f32 v{e0}, v{u0}")
            a(f"v_exp_f32 v{e1}, v{u1}")
            a(f"v_add_f32 v{e0}, 1.0, v{e0}")
            a(f"v_add_f32 v{e1}, 1.0, v{e1}")
            a(f"v_rcp_f32 v{e0}, v{e0}")
            a(f"v_rcp_f32 v{e1}, v{e1}")
            a(f"v_mul_f32 v{u0}, v{u0}, v{e0}")
            a(f"v_mul_f32 v{u1}, v{u1}, v{e1}")
            a(f"v_add_f32 v{vACC+i0}, v{vACC+i0}, v{u0}")
            a(f"v_add_f32 v{vACC+i1}, v{vACC+i1}, v{u1}")
            a(f"v_fma_f32 v{vDot}, v{u0}, v{vWX+i0}, v{vDot}")
            a(f"v_fma_f32 v{vDot}, v{u1}, v{vWX+i1}, v{vDot}")
        a(f"v_mov_b32 v{vT2}, v{vD}")
        a(f"ds_read_b128 v[{vR}:{vR+3}], v{vRecA}")
        a(f"v_add_u32 v{vT0}, v{vRecA}, v{vDOff}")
        a(f"ds_read_b32 v{vD}, v{vT0}")
        a(f"ds_read_b32 v{vNW0}, v{vRecA} offset:32")
        for ro in (8, 4, 2, 1):
            a("s_nop 1")
            a(f"v_add_f32_dpp v{vDot}, v{vDot}, v{vDot} row_ror:{ro} row_mask:0xf bank_mask:0xf")
        a(f"v_fma_f32 v{vPosAcc}, v{vT2}, v{vDot}, v{vPosAcc}")
        a("s_add_u32 s55, s55, 1")
        a("s_cmp_ge_u32 s55, s53")
        a("s_cbranch_scc1 k2_loop_done")
        a("s_waitcnt lgkmcnt(0)")

    step(0, 0, 1)
    step(1, 1, 0)
    a("s_branch k2_step0")

    def flush(X):
        a.label(f"k2_flush{X}")
        a("s_and_saveexec_b64 s[56:57], vcc")
        a(f"v_add_u32 v{vT0}, v{vCur}, v{vQ16}")
        for c in range(4):
            a(f"ds_read_b128 v[{vAt+4*c}:{vAt+4*c+3}], v{vT0} offset:{L_ACC+256*c}")
        a(f"v_lshrrev_b32 v{vT1}, 6, v{vCur}")
        a(f"v_lshrrev_b32 v{vT2}, 2, v{vQ16}")
        a(f"v_add_u32 v{vT1}, v{vT1}, v{vT2}")
        a(f"ds_read_b32 v{vT3}, v{vT1} offset:{L_POSACC}")
        a("s_waitcnt lgkmcnt(0)")
        for i in range(16):
            a(f"v_add_f32 v{vAt+i}, v{vAt+i}, v{vACC+i}")
            a(f"v_mov_b32 v{vACC+i}, 0")
        for c in range(4):
            a(f"ds_write_b128 v{vT0}, v[{vAt+4*c}:{vAt+4*c+3}] offset:{L_ACC+256*c}")
        a(f"v_add_f32 v{vT3}, v{vT3}, v{vPosAcc}")
        a(f"v_mov_b32 v{vPosAcc}, 0")
        a(f"v_cmp_gt_u32 vcc, 48, v{vQ16}")
        a("s_and_saveexec_b64 s[58:59], vcc")
        a(f"ds_write_b32 v{vT1}, v{vT3} offset:{L_POSACC}")
        a("s_mov_b64 exec, s[58:59]")
        a(f"v_mov_b32 v{vCur}, v{vR+3}")
        a("s_waitcnt lgkmcnt(0)")
        a("s_mov_b64 exec, s[56:57]")
        a(f"s_branch k2_back{X}")
    flush(0); flush(1)

    a.label("k2_loop_done")
    a("s_mov_b64 exec, -1")
    a("s_waitcnt vmcnt(0) lgkmcnt(0)")
    a("s_barrier")
    a("v_lshrrev_b32 v9, 4, v0")
    a(f"v_mul_u32_u24 v10, s53, v9")
    a(f"v_cmp_gt_u32 vcc, s52, v10")
    a(f"v_cndmask_b32 v{vCur}, -1, v{vCur}, vcc")
    a("v_lshlrev_b32 v10, 10, v9")
    a(f"v_add_u32 v10, v10, v{vQ16}")
    for c in range(4):
        a(f"ds_write_b128 v10, v[{vACC+4*c}:{vACC+4*c+3}] offset:{L_CARRY+256*c}")
    a("v_lshlrev_b32 v11, 2, v9")
    a(f"ds_write_b32 v11, v{vCur} offset:{L_LAST}")
    a("v_lshlrev_b32 v12, 4, v9")
    a(f"v_lshrrev_b32 v13, 2, v{vQ16}")
    a("v_add_u32 v12, v12, v13")
    a(f"v_cmp_gt_u32 vcc, 64, v{vQ16}")
    a("s_and_saveexec_b64 s[56:57], vcc")
    a(f"ds_write_b32 v12, v{vPosAcc} offset:{L_POSCARRY}")
    a("s_mov_b64 exec, s[56:57]")
    a("s_waitcnt lgkmcnt(0)")
    a("s_barrier")
    a("v_subrev_u32 v13, 4, v11")
    a("v_max_i32 v13, 0, v13")
    a(f"ds_read_b32 v14, v13 offset:{L_LAST}")
    a("s_waitcnt lgkmcnt(0)")
    a("v_cmp_eq_u32 vcc, 0, v9")
    a("v_cndmask_b32 v14, v14, -2, vcc")
    a(f"v_cmp_ne_u32 s[56:57], v14, v{vCur}")
    a(f"v_cmp_ne_u32 s[58:59], -1, v{vCur}")
    a("s_and_b64 s[56:57], s[56:57], s[58:59]")
    a("s_mov_b64 exec, s[56:57]")
    a("s_cbranch_execz k2_fix_done")
    a("v_add_u32 v15, 1, v9")
    a.label("k2_chain")
    a("v_cmp_gt_u32 vcc, 64, v15")
    a("s_and_b64 exec, exec, vcc")
    a("s_cbranch_execz k2_chain_done")
    a("v_lshlrev_b32 v13, 2, v15")
    a(f"ds_read_b32 v14, v13 offset:{L_LAST}")
    a("s_waitcnt lgkmcnt(0)")
    a(f"v_cmp_eq_u32 vcc, v14, v{vCur}")
    a("s_and_b64 exec, exec, vcc")
    a("s_cbranch_execz k2_chain_done")
    a("v_lshlrev_b32 v10, 10, v15")
    a(f"v_add_u32 v10, v10, v{vQ16}")
    for c in range(4):
        a(f"ds_read_b128 v[{vAt+4*c}:{vAt+4*c+3}], v10 offset:{L_CARRY+256*c}")
    a("v_lshlrev_b32 v12, 4, v15")
    a(f"v_lshrrev_b32 v13, 2, v{vQ16}")
    a("v_add_u32 v12, v12, v13")
    a(f"ds_read_b32 v16, v12 offset:{L_POSCARRY}")
    a("s_waitcnt lgkmcnt(0)")
    for i in range(16):
        a(f"v_add_f32 v{vACC+i}, v{vACC+i}, v{vAt+i}")
    a(f"v_add_f32 v{vPosAcc}, v{vPosAcc}, v16")
    a("v_add_u32 v15, 1, v15")
    a("s_branch k2_chain")
    a.label("k2_chain_done")
    a("s_mov_b64 exec, s[56:57]")
    a(f"v_add_u32 v10, v{vCur}, v{vQ16}")
    for c in range(4):
        a(f"ds_read_b128 v[{vAt+4*c}:{vAt+4*c+3}], v10 offset:{L_ACC+256*c}")
    a(f"v_lshrrev_b32 v12, 6, v{vCur}")
    a(f"v_lshrrev_b32 v13, 2, v{vQ16}")
    a("v_add_u32 v12, v12, v13")
    a(f"ds_read_b32 v16, v12 offset:{L_POSACC}")
    a("s_waitcnt lgkmcnt(0)")
    for i in range(16):
        a(f"v_add_f32 v{vAt+i}, v{vAt+i}, v{vACC+i}")
    for c in range(4):
        a(f"ds_write_b128 v10, v[{vAt+4*c}:{vAt+4*c+3}] offset:{L_ACC+256*c}")
    a(f"v_add_f32 v16, v16, v{vPosAcc}")
    a(f"v_cmp_gt_u32 vcc, 48, v{vQ16}")
    a("s_and_b64 exec, exec, vcc")
    a(f"ds_write_b32 v12, v16 offset:{L_POSACC}")
    a.label("k2_fix_done")
    a("s_mov_b64 exec, -1")
    a("s_waitcnt lgkmcnt(0)")
    a("s_barrier")
    a(f"v_mov_b32 v10, {L_FLAG}")
    a("ds_read_b32 v11, v10")
    a("s_waitcnt lgkmcnt(0)")
    a("v_readfirstlane_b32 s49, v11")
    a("s_cmp_eq_u32 s49, 0")
    a("s_cbranch_scc1 k2_epilogue")
    a("s_barrier")
    a("v_mov_b32 v20, 0")
    a("v_lshlrev_b32 v10, 2, v0")
    a("v_cmp_gt_u32 vcc, 128, v0")
    a("s_and_saveexec_b64 s[50:51], vcc")
    a(f"ds_write_b32 v10, v20 offset:{L_HIST}")
    a("s_mov_b64 exec, s[50:51]")
    a("v_cmp_gt_u32 vcc, 2, v0")
    a("s_and_saveexec_b64 s[50:51], vcc")
    a(f"ds_write_b32 v10, v20 offset:{L_TOTAL}")
    a("s_mov_b64 exec, s[50:51]")
    a("v_lshlrev_b32 v9, 4, v0")
    a("s_branch k2_round0")

    a.label("k2_epilogue")
    a("v_and_b32 v1, 63, v0")
    a("v_and_b32 v2, 15, v1")
    a("v_lshrrev_b32 v3, 4, v1")
    a("v_lshlrev_b32 v4, 4, v1")
    a("s_lshl_b32 s49, s3, 14")
    a(f"s_add_u32 s49, s49, {WS_WHF}")
    a("s_mul_i32 s50, s2, 40")
    for nt in range(3):
        a(f"v_add_u32 v{5+nt}, s50, v2")
        a(f"v_add_u32 v{5+nt}, {16*nt}, v{5+nt}")
        a(f"v_min_u32 v{5+nt}, 9999, v{5+nt}")
        a(f"v_lshlrev_b32 v{5+nt}, 9, v{5+nt}")
        a(f"v_lshlrev_b32 v11, 4, v3")
        a(f"v_add_u32 v{5+nt}, v{5+nt}, v11")
        a(f"v_add_u32 v{8+nt}, {16*nt}, v2")
        a(f"v_min_u32 v{8+nt}, 39, v{8+nt}")
        a(f"v_lshlrev_b32 v{8+nt}, 10, v{8+nt}")
        a(f"v_lshlrev_b32 v11, 5, v3")
        a(f"v_add_u32 v{8+nt}, v{8+nt}, v11")
    D0 = 20
    WFr = 32
    BF = 36
    TM = 48
    for ks in range(16):
        a(f"buffer_load_dwordx4 v[{WFr}:{WFr+3}], v4, s[{sWS}:{sWS+3}], s49 offen offset:{ks*1024 if ks < 4 else 0}") if ks < 4 else None
        if ks >= 4:
            a(f"s_add_u32 s51, s49, {ks*1024}")
            a(f"buffer_load_dwordx4 v[{WFr}:{WFr+3}], v4, s[{sWS}:{sWS+3}], s51 offen")
        if ks < 8:
            for nt in range(3):
                a(f"buffer_load_dwordx4 v[{BF+4*nt}:{BF+4*nt+3}], v{5+nt}, s[{sH}:{sH+3}], 0 offen offset:{ks*64}")
            a("s_waitcnt vmcnt(0)")
        else:
            for nt in range(3):
                a(f"ds_read_b128 v[{TM+8*nt}:{TM+8*nt+3}], v{8+nt} offset:{L_ACC+(ks-8)*128}")
                a(f"ds_read_b128 v[{TM+8*nt+4}:{TM+8*nt+7}], v{8+nt} offset:{L_ACC+(ks-8)*128+16}")
            a("s_waitcnt lgkmcnt(0)")
            for nt in range(3):
                for r in range(8):
                    a(f"v_mul_f32 v{TM+8*nt+r}, 0x{NEG_LN2:08x}, v{TM+8*nt+r}")
                for r in range(4):
                    a(f"v_cvt_pk_bf16_f32 v{BF+4*nt+r}, v{TM+8*nt+2*r}, v{TM+8*nt+2*r+1}")
            a("s_waitcnt vmcnt(0)")
        a("s_nop 1")
        for nt in range(3):
            d = D0 + 4 * nt
            c = "0" if ks == 0 else f"v[{d}:{d+3}]"
            a(f"v_mfma_f32_16x16x32_bf16 v[{d}:{d+3}], v[{WFr}:{WFr+3}], v[{BF+4*nt}:{BF+4*nt+3}], {c}")
    a("s_nop 7"); a("s_nop 7")
    a("s_lshl_b32 s51, s3, 5")
    a("v_lshlrev_b32 v11, 3, v3")
    a("v_add_u32 v11, s51, v11")
    for nt in range(3):
        d = D0 + 4 * nt
        a(f"v_add_u32 v12, s50, v2")
        a(f"v_add_u32 v12, {16*nt}, v12")
        a(f"v_lshlrev_b32 v12, 9, v12")
        a(f"v_add_u32 v12, v12, v11")
        if nt == 2:
            a("v_cmp_gt_u32 vcc, 8, v2")
            a("s_and_saveexec_b64 s[56:57], vcc")
        a(f"buffer_load_dwordx2 v[{TM}:{TM+1}], v12, s[{sH}:{sH+3}], 0 offen")
        for r in range(4):
            a(f"v_mul_f32 v{TM+4+r}, 0x{NEG_LOG2E:08x}, v{d+r}")
        for r in range(4):
            a(f"v_exp_f32 v{TM+4+r}, v{TM+4+r}")
        for r in range(4):
            a(f"v_add_f32 v{TM+4+r}, 1.0, v{TM+4+r}")
        for r in range(4):
            a(f"v_rcp_f32 v{TM+4+r}, v{TM+4+r}")
        a("s_nop 0")
        for r in range(4):
            a(f"v_mul_f32 v{d+r}, v{d+r}, v{TM+4+r}")
        a("s_waitcnt vmcnt(0)")
        a(f"v_lshlrev_b32 v{TM+4}, 16, v{TM}")
        a(f"v_and_b32 v{TM+5}, 0xffff0000, v{TM}")
        a(f"v_lshlrev_b32 v{TM+6}, 16, v{TM+1}")
        a(f"v_and_b32 v{TM+7}, 0xffff0000, v{TM+1}")
        for r in range(4):
            a(f"v_add_f32 v{d+r}, v{d+r}, v{TM+4+r}")
        a(f"v_cvt_pk_bf16_f32 v{TM}, v{d}, v{d+1}")
        a(f"v_cvt_pk_bf16_f32 v{TM+1}, v{d+2}, v{d+3}")
        a(f"buffer_store_dwordx2 v[{TM}:{TM+1}], v12, s[{sOUT}:{sOUT+3}], 0 offen")
        if nt == 2:
            a("s_mov_b64 exec, s[56:57]")
    a("v_cmp_gt_u32 vcc, 120, v0")
    a("s_and_saveexec_b64 s[56:57], vcc")
    a("s_cbranch_execz k2_end")
    a("v_mul_u32_u24 v12, 21846, v0")
    a("v_lshrrev_b32 v12, 16, v12")
    a("v_mul_u32_u24 v13, 3, v12")
    a("v_sub_u32 v13, v0, v13")
    a("v_lshlrev_b32 v14, 4, v12")
    a("v_lshlrev_b32 v15, 2, v13")
    a("v_add_u32 v14, v14, v15")
    a(f"ds_read_b32 v16, v14 offset:{L_POSACC}")
    a("s_mul_i32 s51, s2, 240")
    a("v_lshlrev_b32 v17, 1, v0")
    a(f"buffer_load_ushort v18, v17, s[{sPOS}:{sPOS+3}], s51 offen")
    a("s_waitcnt vmcnt(0) lgkmcnt(0)")
    a("v_lshlrev_b32 v18, 16, v18")
    a(f"v_mul_f32 v16, 0x{NEG_LN2:08x}, v16")
    a("v_add_f32 v16, v16, v18")
    a("v_cvt_pk_bf16_f32 v16, v16, v16")
    a("s_add_u32 s51, s51, 5120000")
    a(f"buffer_store_short v16, v17, s[{sOUT}:{sOUT+3}], s51 offen")
    a.label("k2_end")
    a("s_endpgm")
```

```python
import sys

N = 10000; E = 160000; D = 256
WS_A = 0; WS_B = 10240000; WS_REC = 15360000; WS_OFF = 20480000; WS_WHF = 21504000; WS_END = 21766144
NEG_LOG2E = 0xbfb8aa3b
NEG_LN2 = 0xbf317218

class Asm:
    def __init__(self):
        self.lines = []
    def __call__(self, s):
        for ln in s.strip("\n").split("\n"):
            self.lines.append("    " + ln.strip())
    def label(self, l):
        self.lines.append(l + ":")
    def raw(self, s):
        self.lines.append(s)
    def text(self):
        return "\n".join(self.lines) + "\n"

def srd(a, dst, base, nbytes):
    a(f"s_mov_b32 s{dst}, s{base}")
    a(f"s_mov_b32 s{dst+1}, s{base+1}")
    a(f"s_mov_b32 s{dst+2}, {nbytes}")
    a(f"s_mov_b32 s{dst+3}, 0x00020000")

def gen_k1(a):
    a.raw(".globl k1_kernel")
    a.raw(".p2align 8")
    a.raw(".type k1_kernel,@function")
    a.label("k1_kernel")
    a("s_cmp_ge_u32 s2, 250")
    a("s_cbranch_scc1 k1_end")
    a("s_load_dwordx4 s[4:7], s[0:1], 0")
    a("s_load_dwordx4 s[8:11], s[0:1], 16")
    a("s_load_dwordx4 s[12:15], s[0:1], 32")
    a("s_load_dwordx4 s[16:19], s[0:1], 48")
    a("s_load_dwordx2 s[20:21], s[0:1], 80")
    a("v_lshrrev_b32 v1, 6, v0")
    a("v_and_b32 v0, 63, v0")
    a("v_readfirstlane_b32 s3, v1")
    a("s_waitcnt lgkmcnt(0)")
    srd(a, 24, 20, WS_END)
    a("s_cmp_ge_u32 s3, 4")
    a("s_cbranch_scc1 k1_sort")

    srd(a, 28, 4, 5120000)
    srd(a, 32, 14, 263168)
    a("s_lshr_b32 s36, s2, 1")
    a("s_and_b32 s37, s2, 1")
    a("v_lshrrev_b32 v1, 3, v0")
    a("v_lshlrev_b32 v2, 9, v1")
    a("v_and_b32 v3, 7, v0")
    a("v_lshlrev_b32 v3, 4, v3")
    a("v_add_u32 v2, v2, v3")
    a("s_lshl_b32 s38, s3, 7")
    a("s_lshl_b32 s39, s37, 17")
    a("s_add_u32 s38, s38, s39")
    a("v_add_u32 v2, s38, v2")
    a("v_mul_u32_u24 v4, 144, v1")
    a("v_add_u32 v4, v4, v3")
    a("s_mul_i32 s39, s3, 36864")
    a("v_add_u32 v4, s39, v4")
    a("v_and_b32 v5, 15, v0")
    a("v_lshlrev_b32 v5, 9, v5")
    a("v_lshrrev_b32 v6, 4, v0")
    a("v_lshlrev_b32 v7, 4, v6")
    a("v_add_u32 v5, v5, v7")
    a("s_mul_i32 s39, s36, 40960")
    a("v_add_u32 v5, s39, v5")
    a("v_lshlrev_b32 v7, 3, v6")
    a("v_and_b32 v8, 15, v0")
    a("v_lshrrev_b32 v8, 2, v8")
    a("v_add_u32 v7, v7, v8")
    a("v_mul_u32_u24 v7, 144, v7")
    a("v_and_b32 v8, 3, v0")
    a("v_lshlrev_b32 v8, 3, v8")
    a("v_add_u32 v7, v7, v8")
    a("s_mul_i32 s39, s3, 36864")
    a("v_add_u32 v7, s39, v7")
    S0, S1 = 128, 160
    def issue_batch(b):
        base = S0 if b % 2 == 0 else S1
        for i in range(8):
            it = b * 8 + i
            a(f"s_mov_b32 s40, {it*4096}")
            a(f"buffer_load_dwordx4 v[{base+4*i}:{base+4*i+3}], v2, s[32:35], s40 offen")
    def write_batch(b):
        base = S0 if b % 2 == 0 else S1
        for i in range(8):
            it = b * 8 + i
            a(f"ds_write_b128 v4, v[{base+4*i}:{base+4*i+3}] offset:{it*1152}")
    issue_batch(0); issue_batch(1)
    HF = [56, 76]
    WF = [96, 112]
    def issue_h(ks, set_):
        for nt in range(5):
            a(f"s_mov_b32 s40, {nt*8192}")
            a(f"buffer_load_dwordx4 v[{HF[set_]+4*nt}:{HF[set_]+4*nt+3}], v5, s[28:31], s40 offen offset:{ks*64}")
    issue_h(0, 0)
    a("s_waitcnt vmcnt(13)"); write_batch(0)
    issue_batch(2)
    a("s_waitcnt vmcnt(13)"); write_batch(1)
    issue_batch(3)
    a("s_waitcnt vmcnt(8)"); write_batch(2)
    a("s_waitcnt vmcnt(0)"); write_batch(3)
    a("s_waitcnt lgkmcnt(0)")
    def issue_w(ks, set_):
        for ct in range(4):
            for hh in range(2):
                off = (ks * 32 + hh * 4) * 144 + ct * 32
                r = WF[set_] + 4 * ct + 2 * hh
                a(f"ds_read_b64_tr_b16 v[{r}:{r+1}], v7 offset:{off}")
    issue_w(0, 0)
    ACC = 128
    for ks in range(8):
        s = ks % 2
        if ks < 7:
            issue_h(ks + 1, 1 - s)
            issue_w(ks + 1, 1 - s)
            a("s_waitcnt vmcnt(5) lgkmcnt(8)")
        else:
            a("s_waitcnt vmcnt(0) lgkmcnt(0)")
        for nt in range(5):
            for ct in range(4):
                d = ACC + (nt * 4 + ct) * 4
                c = "0" if ks == 0 else f"v[{d}:{d+3}]"
                a(f"v_mfma_f32_16x16x32_bf16 v[{d}:{d+3}], v[{WF[s]+4*ct}:{WF[s]+4*ct+3}], v[{HF[s]+4*nt}:{HF[s]+4*nt+3}], {c}")
    a("s_nop 7"); a("s_nop 7")
    a("v_and_b32 v9, 15, v0")
    a("s_cmp_eq_u32 s37, 1")
    a("s_cbranch_scc1 k1_epi_b")
    for ct in range(4):
        a(f"s_lshl_b32 s40, s3, 6")
        a(f"s_add_u32 s40, s40, {16*ct}")
        a(f"v_lshlrev_b32 v10, 2, v6")
        a(f"v_add_u32 v10, s40, v10")
        a(f"v_lshrrev_b32 v11, 7, v10")
        a(f"v_lshlrev_b32 v11, 1, v11")
        a(f"v_bfe_u32 v12, v10, 2, 1")
        a(f"v_or_b32 v11, v11, v12")
        a(f"v_lshlrev_b32 v11, 8, v11")
        a(f"v_bfe_u32 v12, v10, 3, 4")
        a(f"v_lshlrev_b32 v12, 4, v12")
        a(f"v_add_u32 v11, v11, v12")
        a(f"v_lshlrev_b32 v12, 10, v9")
        a(f"v_add_u32 v11, v11, v12")
        for nt in range(5):
            d = ACC + (nt * 4 + ct) * 4
            for r in range(4):
                a(f"v_mul_f32 v{d+r}, 0x{NEG_LOG2E:08x}, v{d+r}")
            a(f"s_mul_i32 s40, s36, {80*1024}")
            a(f"s_add_u32 s40, s40, {WS_A + nt*16*1024}")
            a(f"buffer_store_dwordx4 v[{d}:{d+3}], v11, s[24:27], s40 offen")
    a("s_branch k1_end")
    a.label("k1_epi_b")
    for ct in range(4):
        a(f"s_lshl_b32 s40, s3, 6")
        a(f"s_add_u32 s40, s40, {16*ct}")
        a(f"v_lshlrev_b32 v10, 2, v6")
        a(f"v_add_u32 v10, s40, v10")
        a(f"v_lshlrev_b32 v11, 1, v10")
        a(f"v_lshlrev_b32 v12, 9, v9")
        a(f"v_add_u32 v11, v11, v12")
        for nt in range(5):
            d = ACC + (nt * 4 + ct) * 4
            for r in range(4):
                a(f"v_mul_f32 v{d+r}, 0x{NEG_LOG2E:08x}, v{d+r}")
            a(f"v_cvt_pk_bf16_f32 v{d}, v{d}, v{d+1}")
            a(f"v_cvt_pk_bf16_f32 v{d+1}, v{d+2}, v{d+3}")
            a(f"s_mul_i32 s40, s36, {80*512}")
            a(f"s_add_u32 s40, s40, {WS_B + nt*16*512}")
            a(f"buffer_store_dwordx2 v[{d}:{d+1}], v11, s[24:27], s40 offen")
    a("s_branch k1_end")

    a.label("k1_sort")
    srd(a, 28, 12, 640000)
    srd(a, 32, 10, 640000)
    srd(a, 36, 8, 320000)
    srd(a, 40, 6, 60000)
    srd(a, 44, 18, 262144)
    a("s_sub_u32 s48, s3, 4")
    a("s_lshl_b32 s49, s2, 2")
    a("s_add_u32 s49, s49, s48")
    a("s_mul_i32 s50, s49, 640")
    a("s_mul_i32 s51, s49, 320")
    a("s_lshl_b32 s52, s48, 10")
    a("s_add_u32 s52, s52, 147456")
    a("v_lshlrev_b32 v19, 2, v0")
    a("v_lshlrev_b32 v32, 1, v0")
    for i in range(3):
        a(f"buffer_load_dword v{1+i}, v19, s[28:31], s50 offen offset:{256*i}")
        a(f"buffer_load_dword v{4+i}, v19, s[32:35], s50 offen offset:{256*i}")
        a(f"buffer_load_ushort v{7+i}, v32, s[36:39], s51 offen offset:{128*i}")
    for r in range(36, 40):
        a(f"v_mov_b32 v{r}, 0")
    a("v_lshlrev_b32 v40, 4, v0")
    a("v_add_u32 v40, s52, v40")
    a("ds_write_b128 v40, v[36:39]")
    a("s_mov_b32 s53, 52429")
    a("s_waitcnt vmcnt(0)")
    for i in range(3):
        a(f"v_mul_u32_u24 v{10+i}, s53, v{1+i}")
        a(f"v_lshrrev_b32 v{10+i}, 21, v{10+i}")
        a(f"v_mul_u32_u24 v{13+i}, 40, v{10+i}")
        a(f"v_sub_u32 v{13+i}, v{1+i}, v{13+i}")
        a(f"v_mul_u32_u24 v41, 6, v{1+i}")
        a(f"v_and_b32 v41, -4, v41")
        a(f"buffer_load_dwordx2 v[{20+4*i}:{21+4*i}], v41, s[40:43], 0 offen")
        a(f"v_mul_u32_u24 v41, 6, v{4+i}")
        a(f"v_and_b32 v41, -4, v41")
        a(f"buffer_load_dwordx2 v[{22+4*i}:{23+4*i}], v41, s[40:43], 0 offen")
    a("s_waitcnt lgkmcnt(0)")
    a("v_mov_b32 v41, 1")
    for i in range(3):
        a(f"v_lshlrev_b32 v42, 2, v{10+i}")
        a(f"v_add_u32 v42, s52, v42")
        if i == 2:
            a("v_cmp_gt_u32 vcc, 32, v0")
            a("s_and_saveexec_b64 s[54:55], vcc")
        a(f"ds_add_rtn_u32 v{16+i}, v42, v41")
        if i == 2:
            a("s_mov_b64 exec, s[54:55]")
    a("s_waitcnt vmcnt(0) lgkmcnt(0)")
    a("ds_read_b128 v[44:47], v40")
    for i in range(3):
        pd, ps = 20 + 4 * i, 22 + 4 * i
        R = 48 + 8 * i
        a(f"v_and_b32 v38, 1, v{1+i}")
        a(f"v_lshlrev_b32 v38, 4, v38")
        a(f"v_lshrrev_b64 v[{pd}:{pd+1}], v38, v[{pd}:{pd+1}]")
        a(f"v_and_b32 v38, 1, v{4+i}")
        a(f"v_lshlrev_b32 v38, 4, v38")
        a(f"v_lshrrev_b64 v[{ps}:{ps+1}], v38, v[{ps}:{ps+1}]")
        a(f"v_lshlrev_b32 v32, 16, v{pd}")
        a(f"v_and_b32 v33, 0xffff0000, v{pd}")
        a(f"v_lshlrev_b32 v34, 16, v{pd+1}")
        a(f"v_lshlrev_b32 v35, 16, v{ps}")
        a(f"v_and_b32 v36, 0xffff0000, v{ps}")
        a(f"v_lshlrev_b32 v37, 16, v{ps+1}")
        a(f"v_sub_f32 v32, v32, v35")
        a(f"v_sub_f32 v33, v33, v36")
        a(f"v_sub_f32 v34, v34, v37")
        a(f"v_cvt_pk_bf16_f32 v35, v32, v33")
        a(f"v_cvt_pk_bf16_f32 v36, v34, v34")
        a(f"v_lshlrev_b32 v{R+4}, 16, v35")
        a(f"v_and_b32 v{R+5}, 0xffff0000, v35")
        a(f"v_lshlrev_b32 v{R+6}, 16, v36")
        a(f"v_mul_f32 v32, v{R+4}, v{R+4}")
        a(f"v_mul_f32 v33, v{R+5}, v{R+5}")
        a(f"v_mul_f32 v34, v{R+6}, v{R+6}")
        a(f"v_cvt_pk_bf16_f32 v35, v32, v33")
        a(f"v_cvt_pk_bf16_f32 v36, v34, v34")
        a(f"v_lshlrev_b32 v32, 16, v35")
        a(f"v_and_b32 v33, 0xffff0000, v35")
        a(f"v_lshlrev_b32 v34, 16, v36")
        a(f"v_add_f32 v32, v32, v33")
        a(f"v_add_f32 v32, v32, v34")
        a(f"v_cvt_pk_bf16_f32 v35, v32, v32")
        a(f"v_lshlrev_b32 v{R+1}, 16, v35")
        a(f"v_lshlrev_b32 v{R+0}, 9, v{4+i}")
        a(f"v_lshlrev_b32 v{R+2}, 16, v{7+i}")
        a(f"v_lshlrev_b32 v{R+3}, 10, v{13+i}")
        a(f"v_mov_b32 v{R+7}, 0")
    a("s_waitcnt lgkmcnt(0)")
    a("v_add_u32 v45, v44, v45")
    a("v_add_u32 v46, v45, v46")
    a("v_add_u32 v38, v46, v47")
    a("v_mov_b32 v39, v38")
    for sh in (1, 2, 4, 8):
        a("s_nop 1")
        a(f"v_add_u32_dpp v39, v39, v39 row_shr:{sh} row_mask:0xf bank_mask:0xf bound_ctrl:0")
    a("s_nop 1")
    a("v_add_u32_dpp v39, v39, v39 row_bcast:15 row_mask:0xa bank_mask:0xf")
    a("s_nop 1")
    a("v_add_u32_dpp v39, v39, v39 row_bcast:31 row_mask:0xc bank_mask:0xf")
    a("v_sub_u32 v39, v39, v38")
    a("v_add_u32 v47, v39, v46")
    a("v_add_u32 v46, v39, v45")
    a("v_add_u32 v45, v39, v44")
    a("v_mov_b32 v44, v39")
    a("ds_write_b128 v40, v[44:47]")
    a("v_lshlrev_b32 v41, 4, v0")
    a("s_lshl_b32 s53, s49, 10")
    a(f"s_add_u32 s53, s53, {WS_OFF}")
    a("buffer_store_dwordx4 v[44:47], v41, s[24:27], s53 offen")
    a("s_waitcnt lgkmcnt(0)")
    for i in range(3):
        a(f"v_lshlrev_b32 v42, 2, v{10+i}")
        a(f"v_add_u32 v42, s52, v42")
        a(f"ds_read_b32 v{32+i}, v42")
    a("s_mul_i32 s53, s49, 5120")
    a(f"s_add_u32 s53, s53, {WS_REC}")
    a("s_waitcnt lgkmcnt(0)")
    for i in range(3):
        R = 48 + 8 * i
        a(f"v_add_u32 v{32+i}, v{32+i}, v{16+i}")
        a(f"v_lshlrev_b32 v{32+i}, 5, v{32+i}")
        if i == 2:
            a("v_cmp_gt_u32 vcc, 32, v0")
            a("s_and_saveexec_b64 s[54:55], vcc")
        a(f"buffer_store_dwordx4 v[{R}:{R+3}], v{32+i}, s[24:27], s53 offen")
        a(f"buffer_store_dwordx4 v[{R+4}:{R+7}], v{32+i}, s[24:27], s53 offen offset:16")
        if i == 2:
            a("s_mov_b64 exec, s[54:55]")
    a("s_cmp_ge_u32 s2, 64")
    a("s_cbranch_scc1 k1_end")
    a("s_lshl_b32 s53, s2, 2")
    a("s_add_u32 s53, s53, s48")
    a("s_lshr_b32 s54, s53, 4")
    a("s_and_b32 s55, s53, 15")
    a("v_and_b32 v1, 15, v0")
    a("s_lshl_b32 s56, s54, 4")
    a("v_add_u32 v1, s56, v1")
    a("v_lshlrev_b32 v1, 1, v1")
    a("v_lshrrev_b32 v2, 4, v0")
    a("v_lshlrev_b32 v2, 3, v2")
    a("s_lshl_b32 s56, s55, 5")
    a("v_add_u32 v2, s56, v2")
    a("s_cmp_ge_u32 s55, 8")
    a("s_cbranch_scc1 k1_whf_perm")
    for jj in range(8):
        a(f"v_add_u32 v3, {jj}, v2")
        a(f"v_lshlrev_b32 v3, 9, v3")
        a(f"v_add_u32 v3, v3, v1")
        a(f"buffer_load_ushort v{8+jj}, v3, s[44:47], 0 offen")
    a("s_branch k1_whf_pack")
    a.label("k1_whf_perm")
    for jj in range(8):
        a(f"v_add_u32 v3, {jj-256 & 0xffffffff}, v2")
        a(f"v_lshrrev_b32 v4, 6, v3")
        a(f"v_lshlrev_b32 v4, 2, v4")
        a(f"v_and_b32 v5, 3, v3")
        a(f"v_add_u32 v4, v4, v5")
        a(f"v_bfe_u32 v5, v3, 2, 4")
        a(f"v_lshlrev_b32 v5, 3, v5")
        a(f"v_and_b32 v6, 7, v4")
        a(f"v_add_u32 v5, v5, v6")
        a(f"v_lshrrev_b32 v6, 3, v4")
        a(f"v_lshlrev_b32 v6, 7, v6")
        a(f"v_add_u32 v5, v5, v6")
        a(f"v_add_u32 v5, 256, v5")
        a(f"v_lshlrev_b32 v5, 9, v5")
        a(f"v_add_u32 v5, v5, v1")
        a(f"buffer_load_ushort v{8+jj}, v5, s[44:47], 0 offen")
    a.label("k1_whf_pack")
    a("s_waitcnt vmcnt(0)")
    for k in range(4):
        a(f"v_lshl_or_b32 v{20+k}, v{9+2*k}, 16, v{8+2*k}")
    a("v_lshlrev_b32 v3, 4, v0")
    a("s_lshl_b32 s53, s53, 10")
    a(f"s_add_u32 s53, s53, {WS_WHF}")
    a("buffer_store_dwordx4 v[20:23], v3, s[24:27], s53 offen")
    a.label("k1_end")
    a("s_endpgm")

def gen_k2_stub(a):
    a.raw(".globl k2_kernel")
    a.raw(".p2align 8")
    a.raw(".type k2_kernel,@function")
    a.label("k2_kernel")
    a("s_endpgm")

HEADER = """; Kernarg layout for this problem (88 bytes, ptrs only, base s[0:1]):
; @launch kernel=k1_kernel grid=(250,1,1) block=(512,1,1) lds={lds1}
; @launch kernel=k2_kernel grid=(250,1,1) block=(1024,1,1) lds={lds2}
.amdgcn_target "amdgcn-amd-amdhsa--gfx950"
.text
"""

def kd(name, vgpr, sgpr):
    acc = (vgpr + 3) // 4 * 4
    return f"""
.amdhsa_kernel {name}
  .amdhsa_next_free_vgpr {vgpr}
  .amdhsa_next_free_sgpr {sgpr}
  .amdhsa_accum_offset {acc}
  .amdhsa_group_segment_fixed_size 0
  .amdhsa_kernarg_size 88
  .amdhsa_user_sgpr_count 2
  .amdhsa_user_sgpr_kernarg_segment_ptr 1
  .amdhsa_system_sgpr_workgroup_id_x 1
.end_amdhsa_kernel
"""

def main():
    a = Asm()
    gen_k1(a)
    try:
        from gen_k2 import gen_k2, K2_LDS, K2_VGPR
        gen_k2(a)
    except ImportError:
        gen_k2_stub(a); K2_LDS = 0; K2_VGPR = 8
    out = HEADER.format(lds1=147456 + 4096, lds2=K2_LDS) + a.text()
    out += '.section .rodata,"a"\n.p2align 6\n' + kd("k1_kernel", 208, 64) + ".p2align 6\n" + kd("k2_kernel", K2_VGPR, 100)
    open(sys.argv[1] if len(sys.argv) > 1 else "gather_scatter__cheap_equivariant_egnn__graph.s", "w").write(out)

if __name__ == "__main__":
    main()
```

```python
import os
DBG = os.environ.get("K2DBG") == "1"
from gen import WS_A, WS_B, WS_REC, WS_OFF, WS_WHF, WS_END, NEG_LOG2E, NEG_LN2, srd

L_MISC = 0; L_ACC = 4096; L_AROW = 45056; L_SORT = 86016
L_HIST = L_MISC; L_START = L_MISC + 256; L_LAST = L_MISC + 512; L_POSACC = L_MISC + 768
L_POSCARRY = L_MISC + 1408; L_TOTAL = L_MISC + 2432; L_FLAG = L_MISC + 2436
L_CARRY = L_AROW
K2_LDS = L_SORT + 65536
K2_VGPR = 128
CAP = 2048

vTid, vQ16, vIdx, vHi, vCur, vPosAcc, vRecA, vDOff, vNW0 = 0, 1, 2, 3, 4, 5, 6, 7, 8
vT0, vT1, vT2 = 9, 10, 11
vR = 12
vD = 16; vDot = 17; vT3 = 18; vT4 = 19
vACC = 20; vW512 = 36; vW513 = 52; vWX = 68; vAt = 84
vB = [100, 108]
vTmp = 116
sWS, sH, sOUT, sPOS, sWE, sWX = 24, 28, 32, 36, 40, 44

L_HT = 112640; L_MT = L_AROW; PITCH = 528
def WFR(ks):
    return 36 + 4 * ks if ks < 12 else 100 + 4 * (ks - 12)

def gen_k2(a):
    stamp_n = [0]
    def stamp():
        if DBG:
            i = stamp_n[0]; stamp_n[0] += 1
            a(f"s_memtime s[{64+2*i}:{65+2*i}]")
    a.raw(".globl k2_kernel")
    a.raw(".p2align 8")
    a.raw(".type k2_kernel,@function")
    a.label("k2_kernel")
    a("s_cmp_ge_u32 s2, 250")
    a("s_cbranch_scc1 k2_end")
    stamp()
    a("s_load_dwordx4 s[4:7], s[0:1], 0")
    a("s_load_dwordx2 s[14:15], s[0:1], 40")
    a("s_load_dwordx2 s[16:17], s[0:1], 48")
    a("s_load_dwordx2 s[22:23], s[0:1], 64")
    a("s_load_dwordx2 s[20:21], s[0:1], 80")
    a(f"v_and_b32 v{vQ16}, 15, v0")
    a(f"v_lshlrev_b32 v{vQ16}, 4, v{vQ16}")
    a("v_lshrrev_b32 v9, 6, v0")
    a("s_nop 0")
    a("v_readfirstlane_b32 s3, v9")
    a("s_waitcnt lgkmcnt(0)")
    srd(a, sWS, 20, WS_END)
    srd(a, sH, 4, 5120000)
    srd(a, sOUT, 22, 5180000)
    srd(a, sPOS, 6, 60000)
    srd(a, sWE, 14, 263168)
    srd(a, sWX, 16, 512)
    a("s_mul_i32 s48, s2, 40960")
    for r in range(4):
        a(f"v_mov_b32 v{20+r}, 0")
    a("v_lshlrev_b32 v9, 4, v0")
    a(f"ds_write_b128 v9, v[20:23] offset:{L_ACC}")
    a(f"ds_write_b128 v9, v[20:23] offset:{L_ACC+16384}")
    a("v_cmp_gt_u32 vcc, 512, v0")
    a("s_and_saveexec_b64 s[50:51], vcc")
    a(f"ds_write_b128 v9, v[20:23] offset:{L_ACC+32768}")
    a("s_mov_b64 exec, s[50:51]")
    a("v_lshlrev_b32 v10, 2, v0")
    a("v_cmp_gt_u32 vcc, 640, v0")
    a("s_and_saveexec_b64 s[50:51], vcc")
    a(f"ds_write_b32 v10, v20 offset:{L_MISC}")
    a("s_mov_b64 exec, s[50:51]")
    a("v_mov_b32 v19, 0")
    a.label("k2_round0")
    a("v_mov_b32 v24, 0")
    a("v_mov_b32 v25, 0")
    a("v_lshlrev_b32 v10, 10, v0")
    a("s_lshl_b32 s49, s2, 2")
    a(f"s_add_u32 s49, s49, {WS_OFF}")
    a("v_cmp_gt_u32 vcc, 1000, v0")
    a("s_and_saveexec_b64 s[50:51], vcc")
    a(f"buffer_load_dwordx2 v[24:25], v10, s[{sWS}:{sWS+3}], s49 offen")
    a("s_mov_b64 exec, s[50:51]")
    a(f"s_mov_b32 s49, {512*512}")
    a(f"buffer_load_dwordx4 v[100:103], v{vQ16}, s[{sWE}:{sWE+3}], s49 offen")
    a(f"buffer_load_dwordx4 v[104:107], v{vQ16}, s[{sWE}:{sWE+3}], s49 offen offset:256")
    a(f"buffer_load_dwordx4 v[108:111], v{vQ16}, s[{sWE}:{sWE+3}], s49 offen offset:512")
    a(f"buffer_load_dwordx4 v[112:115], v{vQ16}, s[{sWE}:{sWE+3}], s49 offen offset:768")
    a(f"buffer_load_dwordx4 v[116:119], v{vQ16}, s[{sWX}:{sWX+3}], 0 offen")
    a(f"buffer_load_dwordx4 v[120:123], v{vQ16}, s[{sWX}:{sWX+3}], 0 offen offset:256")
    a("v_mul_u32_u24 v26, 5120, v0")
    a.label("k2_round")
    a(f"buffer_load_dwordx4 v[28:31], v9, s[{sWS}:{sWS+3}], s48 offen")
    a(f"buffer_load_dwordx4 v[32:35], v9, s[{sWS}:{sWS+3}], s48 offen offset:0")
    a.lines.pop()
    a(f"s_add_u32 s49, s48, 16384")
    a(f"buffer_load_dwordx4 v[32:35], v9, s[{sWS}:{sWS+3}], s49 offen")
    a(f"s_add_u32 s49, s48, 32768")
    a("v_cmp_gt_u32 vcc, 512, v0")
    a("s_and_saveexec_b64 s[50:51], vcc")
    a(f"buffer_load_dwordx4 v[36:39], v9, s[{sWS}:{sWS+3}], s49 offen")
    a("s_mov_b64 exec, s[50:51]")
    a("s_waitcnt vmcnt(0)")
    a(f"v_add_u32 v10, {L_AROW}, v9")
    a(f"ds_write_b128 v10, v[28:31]")
    a(f"ds_write_b128 v10, v[32:35] offset:16384")
    a("v_cmp_gt_u32 vcc, 512, v0")
    a("s_and_saveexec_b64 s[50:51], vcc")
    a(f"ds_write_b128 v10, v[36:39] offset:32768")
    a("s_mov_b64 exec, s[50:51]")
    a("v_add_u32 v24, v24, v19")
    a("v_sub_u32 v27, v25, v24")
    a("v_min_u32 v28, 8, v27")
    a("s_waitcnt lgkmcnt(0)")
    a("s_barrier")
    stamp()
    a(f"v_mov_b32 v29, {L_TOTAL}")
    a("ds_add_rtn_u32 v30, v29, v28")
    a("s_waitcnt lgkmcnt(0)")
    a("v_add_u32 v31, v30, v28")
    a(f"v_cmp_lt_u32 vcc, {CAP}, v31")
    a("s_and_saveexec_b64 s[50:51], vcc")
    a("s_cbranch_execz k2_nocap")
    a("ds_sub_u32 v29, v28")
    a("v_mov_b32 v28, 0")
    a.label("k2_nocap")
    a("s_mov_b64 exec, s[50:51]")
    a("v_cmp_lt_u32 vcc, v28, v27")
    a("s_and_saveexec_b64 s[50:51], vcc")
    a("s_cbranch_execz k2_noflag")
    a(f"v_mov_b32 v29, {L_FLAG}")
    a("v_mov_b32 v30, 1")
    a("ds_write_b32 v29, v30")
    a.label("k2_noflag")
    a("s_mov_b64 exec, s[50:51]")
    a("v_lshlrev_b32 v29, 5, v24")
    a("v_add_u32 v29, v29, v26")
    a(f"s_mov_b32 s49, {WS_REC}")
    for r in range(8):
        R = 32 + 8 * r
        a(f"v_cmp_lt_u32 vcc, {r}, v28")
        a("s_and_saveexec_b64 s[50:51], vcc")
        a(f"buffer_load_dwordx4 v[{R}:{R+3}], v29, s[{sWS}:{sWS+3}], s49 offen offset:{r*32}")
        a(f"buffer_load_dwordx4 v[{R+4}:{R+7}], v29, s[{sWS}:{sWS+3}], s49 offen offset:{r*32+16}")
        a("s_mov_b64 exec, s[50:51]")
    a("v_add_u32 v19, v19, v28")
    a("v_mov_b32 v30, 1")
    a("s_waitcnt vmcnt(0)")
    for r in range(8):
        R = 32 + 8 * r
        a(f"v_cmp_lt_u32 vcc, {r}, v28")
        a("s_and_saveexec_b64 s[50:51], vcc")
        a(f"v_lshrrev_b32 v29, 8, v{R+3}")
        a(f"ds_add_rtn_u32 v{R+7}, v29, v30 offset:{L_HIST}")
        a("s_mov_b64 exec, s[50:51]")
    a("s_waitcnt lgkmcnt(0)")
    a("s_barrier")
    stamp()
    a("s_cmp_lg_u32 s3, 0")
    a("s_cbranch_scc1 k2_scan_done")
    a("v_lshlrev_b32 v29, 2, v0")
    a(f"ds_read_b32 v30, v29 offset:{L_HIST}")
    a("s_waitcnt lgkmcnt(0)")
    a("v_mov_b32 v31, v30")
    for sh in (1, 2, 4, 8):
        a("s_nop 1")
        a(f"v_add_u32_dpp v31, v31, v31 row_shr:{sh} row_mask:0xf bank_mask:0xf bound_ctrl:0")
    a("s_nop 1")
    a("v_add_u32_dpp v31, v31, v31 row_bcast:15 row_mask:0xa bank_mask:0xf")
    a("s_nop 1")
    a("v_add_u32_dpp v31, v31, v31 row_bcast:31 row_mask:0xc bank_mask:0xf")
    a("v_sub_u32 v31, v31, v30")
    a(f"ds_write_b32 v29, v31 offset:{L_START}")
    a("s_waitcnt lgkmcnt(0)")
    a.label("k2_scan_done")
    a("s_barrier")
    a(f"v_mov_b32 v31, {L_SORT}")
    for r in range(8):
        R = 32 + 8 * r
        a(f"v_cmp_lt_u32 vcc, {r}, v28")
        a("s_and_saveexec_b64 s[50:51], vcc")
        a(f"v_lshrrev_b32 v29, 8, v{R+3}")
        a(f"ds_read_b32 v30, v29 offset:{L_START}")
        a("s_waitcnt lgkmcnt(0)")
        a(f"v_add_u32 v30, v30, v{R+7}")
        a(f"v_lshl_add_u32 v30, v30, 5, v31")
        a(f"ds_write_b128 v30, v[{R}:{R+3}]")
        a(f"ds_write_b128 v30, v[{R+4}:{R+7}] offset:16")
        a("s_mov_b64 exec, s[50:51]")
    a(f"v_mov_b32 v29, {L_START+40*4}")
    a("ds_read_b32 v30, v29")
    a("s_waitcnt lgkmcnt(0)")
    a("v_readfirstlane_b32 s52, v30")
    a("s_barrier")
    stamp()
    for k in range(8):
        a(f"v_lshlrev_b32 v{vW512+2*k}, 16, v{100+k}")
        a(f"v_and_b32 v{vW512+2*k+1}, 0xffff0000, v{100+k}")
        a(f"v_lshlrev_b32 v{vW513+2*k}, 16, v{108+k}")
        a(f"v_and_b32 v{vW513+2*k+1}, 0xffff0000, v{108+k}")
    for k in range(8):
        a(f"v_lshlrev_b32 v{vWX+2*k}, 16, v{116+k}")
        a(f"v_and_b32 v{vWX+2*k+1}, 0xffff0000, v{116+k}")
    for i in range(16):
        a(f"v_mul_f32 v{vW512+i}, 0x{NEG_LOG2E:08x}, v{vW512+i}")
        a(f"v_mul_f32 v{vW513+i}, 0x{NEG_LOG2E:08x}, v{vW513+i}")
    a("s_add_u32 s53, s52, 63")
    a("s_lshr_b32 s53, s53, 6")
    a("v_lshrrev_b32 v9, 4, v0")
    a(f"v_mul_u32_u24 v{vIdx}, s53, v9")
    a(f"v_min_u32 v{vIdx}, s52, v{vIdx}")
    a(f"v_add_u32 v{vHi}, s53, v{vIdx}")
    a(f"v_min_u32 v{vHi}, s52, v{vHi}")
    a(f"v_lshlrev_b32 v{vRecA}, 5, v{vIdx}")
    a(f"v_add_u32 v{vRecA}, {L_SORT}, v{vRecA}")
    a(f"v_lshrrev_b32 v{vDOff}, 4, v{vQ16}")
    a(f"v_min_u32 v{vDOff}, 3, v{vDOff}")
    a(f"v_lshlrev_b32 v{vDOff}, 2, v{vDOff}")
    a(f"v_add_u32 v{vDOff}, 16, v{vDOff}")
    for i in range(16):
        a(f"v_mov_b32 v{vACC+i}, 0")
    a(f"v_mov_b32 v{vPosAcc}, 0")
    a(f"ds_read_b128 v[{vR}:{vR+3}], v{vRecA}")
    a(f"v_add_u32 v{vT0}, v{vRecA}, v{vDOff}")
    a(f"ds_read_b32 v{vD}, v{vT0}")
    a(f"ds_read_b32 v{vNW0}, v{vRecA} offset:32")
    a("s_waitcnt lgkmcnt(0)")
    a(f"v_mov_b32 v{vCur}, v{vR+3}")
    a(f"v_add_u32 v{vT0}, v{vR}, v{vQ16}")
    a(f"s_mov_b32 s54, {WS_B}")
    a(f"buffer_load_dwordx4 v[{vB[0]}:{vB[0]+3}], v{vT0}, s[{sWS}:{sWS+3}], s54 offen")
    a(f"buffer_load_dwordx4 v[{vB[0]+4}:{vB[0]+7}], v{vT0}, s[{sWS}:{sWS+3}], s54 offen offset:256")
    a("s_mov_b32 s55, 0")

    def step(X, cur, nxt):
        a.label(f"k2_step{X}")
        a(f"v_cmp_lt_u32 vcc, v{vIdx}, v{vHi}")
        a("s_mov_b64 exec, vcc")
        a("s_cbranch_execz k2_loop_done")
        a(f"v_cmp_ne_u32 vcc, v{vR+3}, v{vCur}")
        a(f"s_cbranch_vccnz k2_flush{X}")
        a.label(f"k2_back{X}")
        a(f"v_add_u32 v{vT0}, v{vR+3}, v{vQ16}")
        for c in range(4):
            a(f"ds_read_b128 v[{vAt+4*c}:{vAt+4*c+3}], v{vT0} offset:{L_AROW+256*c}")
        a(f"v_add_u32 v{vT1}, v{vNW0}, v{vQ16}")
        a(f"buffer_load_dwordx4 v[{vB[nxt]}:{vB[nxt]+3}], v{vT1}, s[{sWS}:{sWS+3}], s54 offen")
        a(f"buffer_load_dwordx4 v[{vB[nxt]+4}:{vB[nxt]+7}], v{vT1}, s[{sWS}:{sWS+3}], s54 offen offset:256")
        a(f"v_add_u32 v{vIdx}, 1, v{vIdx}")
        a(f"v_add_u32 v{vRecA}, 32, v{vRecA}")
        a(f"v_mov_b32 v{vDot}, 0")
        a("s_waitcnt vmcnt(2) lgkmcnt(0)")
        Bc = vB[cur]
        t = vTmp
        for k in range(8):
            i0, i1 = 2 * k, 2 * k + 1
            u0, u1 = vAt + i0, vAt + i1
            x0, x1 = t + (k % 2) * 6, t + (k % 2) * 6 + 1
            e0, e1 = t + (k % 2) * 6 + 2, t + (k % 2) * 6 + 3
            a(f"v_lshlrev_b32 v{x0}, 16, v{Bc+k}")
            a(f"v_and_b32 v{x1}, 0xffff0000, v{Bc+k}")
            a(f"v_fma_f32 v{u0}, v{vR+1}, v{vW512+i0}, v{u0}")
            a(f"v_fma_f32 v{u1}, v{vR+1}, v{vW512+i1}, v{u1}")
            a(f"v_fma_f32 v{u0}, v{vR+2}, v{vW513+i0}, v{u0}")
            a(f"v_fma_f32 v{u1}, v{vR+2}, v{vW513+i1}, v{u1}")
            a(f"v_add_f32 v{u0}, v{u0}, v{x0}")
            a(f"v_add_f32 v{u1}, v{u1}, v{x1}")
            a(f"v_exp_f32 v{e0}, v{u0}")
            a(f"v_exp_f32 v{e1}, v{u1}")
            a(f"v_add_f32 v{e0}, 1.0, v{e0}")
            a(f"v_add_f32 v{e1}, 1.0, v{e1}")
            a(f"v_rcp_f32 v{e0}, v{e0}")
            a(f"v_rcp_f32 v{e1}, v{e1}")
            a(f"v_mul_f32 v{u0}, v{u0}, v{e0}")
            a(f"v_mul_f32 v{u1}, v{u1}, v{e1}")
            a(f"v_add_f32 v{vACC+i0}, v{vACC+i0}, v{u0}")
            a(f"v_add_f32 v{vACC+i1}, v{vACC+i1}, v{u1}")
            a(f"v_fma_f32 v{vDot}, v{u0}, v{vWX+i0}, v{vDot}")
            a(f"v_fma_f32 v{vDot}, v{u1}, v{vWX+i1}, v{vDot}")
        a(f"v_mov_b32 v{vT2}, v{vD}")
        a(f"ds_read_b128 v[{vR}:{vR+3}], v{vRecA}")
        a(f"v_add_u32 v{vT0}, v{vRecA}, v{vDOff}")
        a(f"ds_read_b32 v{vD}, v{vT0}")
        a(f"ds_read_b32 v{vNW0}, v{vRecA} offset:32")
        for ro in (8, 4, 2, 1):
            a("s_nop 1")
            a(f"v_add_f32_dpp v{vDot}, v{vDot}, v{vDot} row_ror:{ro} row_mask:0xf bank_mask:0xf")
        a(f"v_fma_f32 v{vPosAcc}, v{vT2}, v{vDot}, v{vPosAcc}")
        a("s_add_u32 s55, s55, 1")
        a("s_cmp_ge_u32 s55, s53")
        a("s_cbranch_scc1 k2_loop_done")
        a("s_waitcnt lgkmcnt(0)")

    step(0, 0, 1)
    step(1, 1, 0)
    a("s_branch k2_step0")

    def flush(X):
        a.label(f"k2_flush{X}")
        a("s_and_saveexec_b64 s[56:57], vcc")
        a(f"v_add_u32 v{vT0}, v{vCur}, v{vQ16}")
        for c in range(4):
            a(f"ds_read_b128 v[{vAt+4*c}:{vAt+4*c+3}], v{vT0} offset:{L_ACC+256*c}")
        a(f"v_lshrrev_b32 v{vT1}, 6, v{vCur}")
        a(f"v_lshrrev_b32 v{vT2}, 2, v{vQ16}")
        a(f"v_add_u32 v{vT1}, v{vT1}, v{vT2}")
        a(f"ds_read_b32 v{vT3}, v{vT1} offset:{L_POSACC}")
        a("s_waitcnt lgkmcnt(0)")
        for i in range(16):
            a(f"v_add_f32 v{vAt+i}, v{vAt+i}, v{vACC+i}")
            a(f"v_mov_b32 v{vACC+i}, 0")
        for c in range(4):
            a(f"ds_write_b128 v{vT0}, v[{vAt+4*c}:{vAt+4*c+3}] offset:{L_ACC+256*c}")
        a(f"v_add_f32 v{vT3}, v{vT3}, v{vPosAcc}")
        a(f"v_mov_b32 v{vPosAcc}, 0")
        a(f"v_cmp_gt_u32 vcc, 48, v{vQ16}")
        a("s_and_saveexec_b64 s[58:59], vcc")
        a(f"ds_write_b32 v{vT1}, v{vT3} offset:{L_POSACC}")
        a("s_mov_b64 exec, s[58:59]")
        a(f"v_mov_b32 v{vCur}, v{vR+3}")
        a("s_waitcnt lgkmcnt(0)")
        a("s_mov_b64 exec, s[56:57]")
        a(f"s_branch k2_back{X}")
    flush(0); flush(1)

    a.label("k2_loop_done")
    a("s_mov_b64 exec, -1")
    a("s_waitcnt vmcnt(0) lgkmcnt(0)")
    a("s_barrier")
    stamp()
    a("v_and_b32 v116, 63, v0")
    a("v_lshlrev_b32 v116, 4, v116")
    a("s_lshl_b32 s49, s3, 14")
    a(f"s_add_u32 s49, s49, {WS_WHF}")
    for ks in range(16):
        R = WFR(ks)
        a(f"s_add_u32 s51, s49, {ks*1024}")
        a(f"buffer_load_dwordx4 v[{R}:{R+3}], v116, s[{sWS}:{sWS+3}], s51 offen")
    a("s_mul_i32 s50, s2, 40")
    for hh in range(2):
        a(f"v_add_u32 v117, {1024*hh}, v0")
        a("v_lshrrev_b32 v118, 5, v117")
        a("v_add_u32 v118, s50, v118")
        a("v_min_u32 v118, 9999, v118")
        a("v_lshlrev_b32 v118, 9, v118")
        a("v_and_b32 v117, 31, v117")
        a("v_lshl_add_u32 v118, v117, 4, v118")
        if hh == 1:
            a("v_cmp_gt_u32 vcc, 512, v0")
            a("s_and_saveexec_b64 s[50:51], vcc")
        a(f"buffer_load_dwordx4 v[{120+4*hh}:{123+4*hh}], v118, s[{sH}:{sH+3}], 0 offen")
        if hh == 1:
            a("s_mov_b64 exec, s[50:51]")
    a("v_lshrrev_b32 v9, 4, v0")
    a(f"v_mul_u32_u24 v10, s53, v9")
    a(f"v_cmp_gt_u32 vcc, s52, v10")
    a(f"v_cndmask_b32 v{vCur}, -1, v{vCur}, vcc")
    a("v_lshlrev_b32 v10, 10, v9")
    a(f"v_add_u32 v10, v10, v{vQ16}")
    for c in range(4):
        a(f"ds_write_b128 v10, v[{vACC+4*c}:{vACC+4*c+3}] offset:{L_CARRY+256*c}")
    a("v_lshlrev_b32 v11, 2, v9")
    a(f"ds_write_b32 v11, v{vCur} offset:{L_LAST}")
    a("v_lshlrev_b32 v12, 4, v9")
    a(f"v_lshrrev_b32 v13, 2, v{vQ16}")
    a("v_add_u32 v12, v12, v13")
    a(f"v_cmp_gt_u32 vcc, 64, v{vQ16}")
    a("s_and_saveexec_b64 s[56:57], vcc")
    a(f"ds_write_b32 v12, v{vPosAcc} offset:{L_POSCARRY}")
    a("s_mov_b64 exec, s[56:57]")
    a("s_waitcnt lgkmcnt(0)")
    a("s_barrier")
    a("v_subrev_u32 v13, 4, v11")
    a("v_max_i32 v13, 0, v13")
    a(f"ds_read_b32 v14, v13 offset:{L_LAST}")
    a("s_waitcnt lgkmcnt(0)")
    a("v_cmp_eq_u32 vcc, 0, v9")
    a("v_cndmask_b32 v14, v14, -2, vcc")
    a(f"v_cmp_ne_u32 s[56:57], v14, v{vCur}")
    a(f"v_cmp_ne_u32 s[58:59], -1, v{vCur}")
    a("s_and_b64 s[56:57], s[56:57], s[58:59]")
    a("s_mov_b64 exec, s[56:57]")
    a("s_cbranch_execz k2_fix_done")
    a("v_add_u32 v15, 1, v9")
    a.label("k2_chain")
    a("v_cmp_gt_u32 vcc, 64, v15")
    a("s_and_b64 exec, exec, vcc")
    a("s_cbranch_execz k2_chain_done")
    a("v_lshlrev_b32 v13, 2, v15")
    a(f"ds_read_b32 v14, v13 offset:{L_LAST}")
    a("s_waitcnt lgkmcnt(0)")
    a(f"v_cmp_eq_u32 vcc, v14, v{vCur}")
    a("s_and_b64 exec, exec, vcc")
    a("s_cbranch_execz k2_chain_done")
    a("v_lshlrev_b32 v10, 10, v15")
    a(f"v_add_u32 v10, v10, v{vQ16}")
    for c in range(4):
        a(f"ds_read_b128 v[{vAt+4*c}:{vAt+4*c+3}], v10 offset:{L_CARRY+256*c}")
    a("v_lshlrev_b32 v12, 4, v15")
    a(f"v_lshrrev_b32 v13, 2, v{vQ16}")
    a("v_add_u32 v12, v12, v13")
    a(f"ds_read_b32 v16, v12 offset:{L_POSCARRY}")
    a("s_waitcnt lgkmcnt(0)")
    for i in range(16):
        a(f"v_add_f32 v{vACC+i}, v{vACC+i}, v{vAt+i}")
    a(f"v_add_f32 v{vPosAcc}, v{vPosAcc}, v16")
    a("v_add_u32 v15, 1, v15")
    a("s_branch k2_chain")
    a.label("k2_chain_done")
    a("s_mov_b64 exec, s[56:57]")
    a(f"v_add_u32 v10, v{vCur}, v{vQ16}")
    for c in range(4):
        a(f"ds_read_b128 v[{vAt+4*c}:{vAt+4*c+3}], v10 offset:{L_ACC+256*c}")
    a(f"v_lshrrev_b32 v12, 6, v{vCur}")
    a(f"v_lshrrev_b32 v13, 2, v{vQ16}")
    a("v_add_u32 v12, v12, v13")
    a(f"ds_read_b32 v16, v12 offset:{L_POSACC}")
    a("s_waitcnt lgkmcnt(0)")
    for i in range(16):
        a(f"v_add_f32 v{vAt+i}, v{vAt+i}, v{vACC+i}")
    for c in range(4):
        a(f"ds_write_b128 v10, v[{vAt+4*c}:{vAt+4*c+3}] offset:{L_ACC+256*c}")
    a(f"v_add_f32 v16, v16, v{vPosAcc}")
    a(f"v_cmp_gt_u32 vcc, 48, v{vQ16}")
    a("s_and_b64 exec, exec, vcc")
    a(f"ds_write_b32 v12, v16 offset:{L_POSACC}")
    a.label("k2_fix_done")
    a("s_mov_b64 exec, -1")
    a("s_waitcnt vmcnt(0)")
    for hh in range(2):
        a(f"v_add_u32 v117, {1024*hh}, v0")
        a("v_lshrrev_b32 v118, 5, v117")
        a(f"v_mul_u32_u24 v118, {PITCH}, v118")
        a("v_and_b32 v117, 31, v117")
        a("v_lshl_add_u32 v118, v117, 4, v118")
        a(f"v_add_u32 v118, {L_HT}, v118")
        if hh == 1:
            a("v_cmp_gt_u32 vcc, 512, v0")
            a("s_and_saveexec_b64 s[50:51], vcc")
        a(f"ds_write_b128 v118, v[{120+4*hh}:{123+4*hh}]")
        if hh == 1:
            a("s_mov_b64 exec, s[50:51]")
    a("s_waitcnt lgkmcnt(0)")
    a("s_barrier")
    stamp()
    a(f"v_mov_b32 v10, {L_FLAG}")
    a("ds_read_b32 v11, v10")
    a("s_waitcnt lgkmcnt(0)")
    a("v_readfirstlane_b32 s49, v11")
    a("s_cmp_eq_u32 s49, 0")
    a("s_cbranch_scc1 k2_epilogue")
    a("s_barrier")
    a("v_mov_b32 v20, 0")
    a("v_lshlrev_b32 v10, 2, v0")
    a("v_cmp_gt_u32 vcc, 128, v0")
    a("s_and_saveexec_b64 s[50:51], vcc")
    a(f"ds_write_b32 v10, v20 offset:{L_HIST}")
    a("s_mov_b64 exec, s[50:51]")
    a("v_cmp_gt_u32 vcc, 2, v0")
    a("s_and_saveexec_b64 s[50:51], vcc")
    a(f"ds_write_b32 v10, v20 offset:{L_TOTAL}")
    a("s_mov_b64 exec, s[50:51]")
    a("v_lshlrev_b32 v9, 4, v0")
    a("s_branch k2_round0")

    a.label("k2_epilogue")
    a("v_and_b32 v1, 63, v0")
    a("v_and_b32 v2, 15, v1")
    a("v_lshrrev_b32 v3, 4, v1")
    for hh in range(2):
        a(f"v_add_u32 v4, {1024*hh}, v0")
        a("v_lshrrev_b32 v5, 5, v4")
        a("v_and_b32 v4, 31, v4")
        a("v_lshlrev_b32 v6, 10, v5")
        a("v_lshl_add_u32 v6, v4, 5, v6")
        a(f"v_mul_u32_u24 v7, {PITCH}, v5")
        a("v_lshl_add_u32 v7, v4, 4, v7")
        a(f"v_add_u32 v7, {L_MT}, v7")
        if hh == 1:
            a("v_cmp_gt_u32 vcc, 256, v0")
            a("s_and_saveexec_b64 s[50:51], vcc")
        a(f"ds_read_b128 v[8:11], v6 offset:{L_ACC}")
        a(f"ds_read_b128 v[12:15], v6 offset:{L_ACC+16}")
        a("s_waitcnt lgkmcnt(0)")
        for r in range(8):
            a(f"v_mul_f32 v{8+r}, 0x{NEG_LN2:08x}, v{8+r}")
        for r in range(4):
            a(f"v_cvt_pk_bf16_f32 v{8+r}, v{8+2*r}, v{9+2*r}")
        a("ds_write_b128 v7, v[8:11]")
        if hh == 1:
            a("s_mov_b64 exec, s[50:51]")
    a("s_waitcnt lgkmcnt(0)")
    a("s_barrier")
    a("s_mul_i32 s50, s2, 40")
    a(f"v_mul_u32_u24 v5, {PITCH}, v2")
    a("v_lshl_add_u32 v5, v3, 4, v5")
    a(f"v_add_u32 v6, {L_HT}, v5")
    a(f"v_add_u32 v7, {L_MT}, v5")
    D0 = 20
    TM = 36
    BFS = [84, 116]
    def rd(ks):
        B = BFS[ks % 2]
        for nt in range(3):
            if ks < 8:
                a(f"ds_read_b128 v[{B+4*nt}:{B+4*nt+3}], v6 offset:{nt*16*PITCH+ks*64}")
            else:
                a(f"ds_read_b128 v[{B+4*nt}:{B+4*nt+3}], v7 offset:{nt*16*PITCH+(ks-8)*64}")
    rd(0)
    for ks in range(16):
        if ks < 15:
            rd(ks + 1)
            a("s_waitcnt lgkmcnt(3)")
        else:
            a("s_waitcnt lgkmcnt(0)")
        B = BFS[ks % 2]; W = WFR(ks)
        for nt in range(3):
            d = D0 + 4 * nt
            c = "0" if ks == 0 else f"v[{d}:{d+3}]"
            a(f"v_mfma_f32_16x16x32_bf16 v[{d}:{d+3}], v[{W}:{W+3}], v[{B+4*nt}:{B+4*nt+3}], {c}")
    a("s_nop 7"); a("s_nop 7")
    a("s_lshl_b32 s51, s3, 5")
    a("v_lshlrev_b32 v11, 3, v3")
    a("v_add_u32 v11, s51, v11")
    a(f"v_mul_u32_u24 v13, {PITCH}, v2")
    a("v_add_u32 v13, v13, v11")
    a(f"v_add_u32 v13, {L_HT}, v13")
    for nt in range(3):
        d = D0 + 4 * nt
        a(f"v_add_u32 v12, s50, v2")
        a(f"v_add_u32 v12, {16*nt}, v12")
        a(f"v_lshlrev_b32 v12, 9, v12")
        a(f"v_add_u32 v12, v12, v11")
        if nt == 2:
            a("v_cmp_gt_u32 vcc, 8, v2")
            a("s_and_saveexec_b64 s[56:57], vcc")
        a(f"ds_read_b64 v[{TM}:{TM+1}], v13 offset:{nt*16*PITCH}")
        for r in range(4):
            a(f"v_mul_f32 v{TM+4+r}, 0x{NEG_LOG2E:08x}, v{d+r}")
        for r in range(4):
            a(f"v_exp_f32 v{TM+4+r}, v{TM+4+r}")
        for r in range(4):
            a(f"v_add_f32 v{TM+4+r}, 1.0, v{TM+4+r}")
        for r in range(4):
            a(f"v_rcp_f32 v{TM+4+r}, v{TM+4+r}")
        a("s_nop 0")
        for r in range(4):
            a(f"v_mul_f32 v{d+r}, v{d+r}, v{TM+4+r}")
        a("s_waitcnt lgkmcnt(0)")
        a(f"v_lshlrev_b32 v{TM+4}, 16, v{TM}")
        a(f"v_and_b32 v{TM+5}, 0xffff0000, v{TM}")
        a(f"v_lshlrev_b32 v{TM+6}, 16, v{TM+1}")
        a(f"v_and_b32 v{TM+7}, 0xffff0000, v{TM+1}")
        for r in range(4):
            a(f"v_add_f32 v{d+r}, v{d+r}, v{TM+4+r}")
        a(f"v_cvt_pk_bf16_f32 v{TM}, v{d}, v{d+1}")
        a(f"v_cvt_pk_bf16_f32 v{TM+1}, v{d+2}, v{d+3}")
        a(f"buffer_store_dwordx2 v[{TM}:{TM+1}], v12, s[{sOUT}:{sOUT+3}], 0 offen")
        if nt == 2:
            a("s_mov_b64 exec, s[56:57]")
    stamp()
    if DBG:
        a("s_load_dwordx2 s[60:61], s[0:1], 72")
        a("s_waitcnt lgkmcnt(0)")
        a("s_mov_b32 s62, 256")
        a("s_mov_b32 s63, 0x00020000")
        a("s_cmp_lg_u32 s2, 0")
        a("s_cbranch_scc1 k2_nodbg")
        for i in range(stamp_n[0]):
            a(f"s_sub_u32 s49, s{64+2*i}, s64")
            a(f"v_mov_b32 v12, s49")
            a(f"v_mov_b32 v13, {4*i}")
            a("v_cmp_eq_u32 vcc, 0, v0")
            a("s_and_saveexec_b64 s[56:57], vcc")
            a("buffer_store_dword v12, v13, s[60:63], 0 offen")
            a("s_mov_b64 exec, s[56:57]")
        a.label("k2_nodbg")
    a("v_cmp_gt_u32 vcc, 120, v0")
    a("s_and_saveexec_b64 s[56:57], vcc")
    a("s_cbranch_execz k2_end")
    a("v_mul_u32_u24 v12, 21846, v0")
    a("v_lshrrev_b32 v12, 16, v12")
    a("v_mul_u32_u24 v13, 3, v12")
    a("v_sub_u32 v13, v0, v13")
    a("v_lshlrev_b32 v14, 4, v12")
    a("v_lshlrev_b32 v15, 2, v13")
    a("v_add_u32 v14, v14, v15")
    a(f"ds_read_b32 v16, v14 offset:{L_POSACC}")
    a("s_mul_i32 s51, s2, 240")
    a("v_lshlrev_b32 v17, 1, v0")
    a(f"buffer_load_ushort v18, v17, s[{sPOS}:{sPOS+3}], s51 offen")
    a("s_waitcnt vmcnt(0) lgkmcnt(0)")
    a("v_lshlrev_b32 v18, 16, v18")
    a(f"v_mul_f32 v16, 0x{NEG_LN2:08x}, v16")
    a("v_add_f32 v16, v16, v18")
    a("v_cvt_pk_bf16_f32 v16, v16, v16")
    a("s_add_u32 s51, s51, 5120000")
    a(f"buffer_store_short v16, v17, s[{sOUT}:{sOUT+3}], s51 offen")
    a.label("k2_end")
    a("s_endpgm")
```

```python
import sys, os
DBG1 = os.environ.get("K1DBG") == "1"
_st = [0]
def stamp1(a):
    if DBG1:
        i = _st[0]; _st[0] += 1
        a(f"s_memtime s[{64+2*i}:{65+2*i}]")
def dump1(a, base, n0):
    if DBG1:
        a("s_load_dwordx2 s[60:61], s[0:1], 72")
        a("s_waitcnt lgkmcnt(0)")
        a("s_mov_b32 s62, 256")
        a("s_mov_b32 s63, 0x00020000")
        a("s_cmp_lg_u32 s2, 0")
        a(f"s_cbranch_scc1 k1_nodbg{base}")
        for i in range(n0, _st[0]):
            a(f"s_sub_u32 s59, s{64+2*i}, s64")
            a(f"v_mov_b32 v12, s59")
            a(f"v_mov_b32 v13, {4*(base+i-n0)}")
            a("v_cmp_eq_u32 vcc, 0, v0")
            a("s_and_saveexec_b64 s[56:57], vcc")
            a("buffer_store_dword v12, v13, s[60:63], 0 offen")
            a("s_mov_b64 exec, s[56:57]")
        a.label(f"k1_nodbg{base}")

N = 10000; E = 160000; D = 256
WS_A = 0; WS_B = 10240000; WS_REC = 15360000; WS_OFF = 20480000; WS_WHF = 21504000; WS_END = 21766144
NEG_LOG2E = 0xbfb8aa3b
NEG_LN2 = 0xbf317218

class Asm:
    def __init__(self):
        self.lines = []
    def __call__(self, s):
        for ln in s.strip("\n").split("\n"):
            self.lines.append("    " + ln.strip())
    def label(self, l):
        self.lines.append(l + ":")
    def raw(self, s):
        self.lines.append(s)
    def text(self):
        return "\n".join(self.lines) + "\n"

def srd(a, dst, base, nbytes):
    a(f"s_mov_b32 s{dst}, s{base}")
    a(f"s_mov_b32 s{dst+1}, s{base+1}")
    a(f"s_mov_b32 s{dst+2}, {nbytes}")
    a(f"s_mov_b32 s{dst+3}, 0x00020000")

def gen_k1(a):
    a.raw(".globl k1_kernel")
    a.raw(".p2align 8")
    a.raw(".type k1_kernel,@function")
    a.label("k1_kernel")
    a("s_cmp_ge_u32 s2, 250")
    a("s_cbranch_scc1 k1_end")
    stamp1(a)
    a("s_load_dwordx4 s[4:7], s[0:1], 0")
    a("s_load_dwordx4 s[8:11], s[0:1], 16")
    a("s_load_dwordx4 s[12:15], s[0:1], 32")
    a("s_load_dwordx4 s[16:19], s[0:1], 48")
    a("s_load_dwordx2 s[20:21], s[0:1], 80")
    a("v_lshrrev_b32 v1, 6, v0")
    a("v_and_b32 v0, 63, v0")
    a("v_readfirstlane_b32 s3, v1")
    a("s_waitcnt lgkmcnt(0)")
    srd(a, 24, 20, WS_END)
    a("s_cmp_ge_u32 s3, 4")
    a("s_cbranch_scc1 k1_sort")

    srd(a, 28, 4, 5120000)
    srd(a, 32, 14, 263168)
    a("s_lshr_b32 s36, s2, 1")
    a("s_and_b32 s37, s2, 1")
    a("v_lshrrev_b32 v1, 3, v0")
    a("v_lshlrev_b32 v2, 9, v1")
    a("v_and_b32 v3, 7, v0")
    a("v_lshlrev_b32 v3, 4, v3")
    a("v_add_u32 v2, v2, v3")
    a("s_lshl_b32 s38, s3, 7")
    a("s_lshl_b32 s39, s37, 17")
    a("s_add_u32 s38, s38, s39")
    a("v_add_u32 v2, s38, v2")
    a("v_mul_u32_u24 v4, 144, v1")
    a("v_add_u32 v4, v4, v3")
    a("s_mul_i32 s39, s3, 36864")
    a("v_add_u32 v4, s39, v4")
    a("v_and_b32 v5, 15, v0")
    a("v_lshlrev_b32 v5, 9, v5")
    a("v_lshrrev_b32 v6, 4, v0")
    a("v_lshlrev_b32 v7, 4, v6")
    a("v_add_u32 v5, v5, v7")
    a("s_mul_i32 s39, s36, 40960")
    a("v_add_u32 v5, s39, v5")
    a("v_lshlrev_b32 v7, 3, v6")
    a("v_and_b32 v8, 15, v0")
    a("v_lshrrev_b32 v8, 2, v8")
    a("v_add_u32 v7, v7, v8")
    a("v_mul_u32_u24 v7, 144, v7")
    a("v_and_b32 v8, 3, v0")
    a("v_lshlrev_b32 v8, 3, v8")
    a("v_add_u32 v7, v7, v8")
    a("s_mul_i32 s39, s3, 36864")
    a("v_add_u32 v7, s39, v7")
    S0, S1 = 168, 200
    def issue_batch(b):
        base = S0 if b % 2 == 0 else S1
        for i in range(8):
            it = b * 8 + i
            a(f"s_mov_b32 s40, {it*4096}")
            a(f"buffer_load_dwordx4 v[{base+4*i}:{base+4*i+3}], v2, s[32:35], s40 offen")
    def write_batch(b):
        base = S0 if b % 2 == 0 else S1
        for i in range(8):
            it = b * 8 + i
            a(f"ds_write_b128 v4, v[{base+4*i}:{base+4*i+3}] offset:{it*1152}")
    issue_batch(0); issue_batch(1)
    HF = [56, 76, 96, 116]
    WF = [136, 152]
    def issue_h(ks, set_):
        for nt in range(5):
            a(f"s_mov_b32 s40, {nt*8192}")
            a(f"buffer_load_dwordx4 v[{HF[set_]+4*nt}:{HF[set_]+4*nt+3}], v5, s[28:31], s40 offen offset:{ks*64}")
    for k_ in range(4): issue_h(k_, k_)
    a("s_waitcnt vmcnt(28)"); write_batch(0)
    issue_batch(2)
    a("s_waitcnt vmcnt(28)"); write_batch(1)
    issue_batch(3)
    a("s_waitcnt vmcnt(8)"); write_batch(2)
    a("s_waitcnt vmcnt(0)"); write_batch(3)
    a("s_waitcnt lgkmcnt(0)")
    stamp1(a)
    def issue_w(ks, set_):
        for ct in range(4):
            for hh in range(2):
                off = (ks * 32 + hh * 4) * 144 + ct * 32
                r = WF[set_] + 4 * ct + 2 * hh
                a(f"ds_read_b64_tr_b16 v[{r}:{r+1}], v7 offset:{off}")
    issue_w(0, 0)
    ACC = 168
    for ks in range(8):
        s = ks % 2
        if ks < 7:
            issue_w(ks + 1, 1 - s)
            a(f"s_waitcnt vmcnt({5*(7-ks) if ks >= 4 else 20}) lgkmcnt(8)")
        else:
            a("s_waitcnt vmcnt(0) lgkmcnt(0)")
        for nt in range(5):
            for ct in range(4):
                d = ACC + (nt * 4 + ct) * 4
                c = "0" if ks == 0 else f"v[{d}:{d+3}]"
                a(f"v_mfma_f32_16x16x32_bf16 v[{d}:{d+3}], v[{WF[s]+4*ct}:{WF[s]+4*ct+3}], v[{HF[ks%4]+4*nt}:{HF[ks%4]+4*nt+3}], {c}")
        if ks < 4:
            a("s_nop 7"); a("s_nop 7")
            issue_h(ks + 4, ks)
    a("s_nop 7"); a("s_nop 7")
    stamp1(a)
    a("v_and_b32 v9, 15, v0")
    a("s_cmp_eq_u32 s37, 1")
    a("s_cbranch_scc1 k1_epi_b")
    for ct in range(4):
        a(f"s_lshl_b32 s40, s3, 6")
        a(f"s_add_u32 s40, s40, {16*ct}")
        a(f"v_lshlrev_b32 v10, 2, v6")
        a(f"v_add_u32 v10, s40, v10")
        a(f"v_lshrrev_b32 v11, 7, v10")
        a(f"v_lshlrev_b32 v11, 1, v11")
        a(f"v_bfe_u32 v12, v10, 2, 1")
        a(f"v_or_b32 v11, v11, v12")
        a(f"v_lshlrev_b32 v11, 8, v11")
        a(f"v_bfe_u32 v12, v10, 3, 4")
        a(f"v_lshlrev_b32 v12, 4, v12")
        a(f"v_add_u32 v11, v11, v12")
        a(f"v_lshlrev_b32 v12, 10, v9")
        a(f"v_add_u32 v11, v11, v12")
        for nt in range(5):
            d = ACC + (nt * 4 + ct) * 4
            for r in range(4):
                a(f"v_mul_f32 v{d+r}, 0x{NEG_LOG2E:08x}, v{d+r}")
            a(f"s_mul_i32 s40, s36, {80*1024}")
            a(f"s_add_u32 s40, s40, {WS_A + nt*16*1024}")
            a(f"buffer_store_dwordx4 v[{d}:{d+3}], v11, s[24:27], s40 offen")
    stamp1(a)
    a("s_cmp_lg_u32 s3, 0")
    a("s_cbranch_scc1 k1_end")
    dump1(a, 0, 0)
    a("s_branch k1_end")
    a.label("k1_epi_b")
    for ct in range(4):
        a(f"s_lshl_b32 s40, s3, 6")
        a(f"s_add_u32 s40, s40, {16*ct}")
        a(f"v_lshlrev_b32 v10, 2, v6")
        a(f"v_add_u32 v10, s40, v10")
        a(f"v_lshlrev_b32 v11, 1, v10")
        a(f"v_lshlrev_b32 v12, 9, v9")
        a(f"v_add_u32 v11, v11, v12")
        for nt in range(5):
            d = ACC + (nt * 4 + ct) * 4
            for r in range(4):
                a(f"v_mul_f32 v{d+r}, 0x{NEG_LOG2E:08x}, v{d+r}")
            a(f"v_cvt_pk_bf16_f32 v{d}, v{d}, v{d+1}")
            a(f"v_cvt_pk_bf16_f32 v{d+1}, v{d+2}, v{d+3}")
            a(f"s_mul_i32 s40, s36, {80*512}")
            a(f"s_add_u32 s40, s40, {WS_B + nt*16*512}")
            a(f"buffer_store_dwordx2 v[{d}:{d+1}], v11, s[24:27], s40 offen")
    a("s_branch k1_end")

    a.label("k1_sort")
    srd(a, 28, 12, 640000)
    srd(a, 32, 10, 640000)
    srd(a, 36, 8, 320000)
    srd(a, 40, 6, 60000)
    srd(a, 44, 18, 262144)
    a("s_sub_u32 s48, s3, 4")
    a("s_lshl_b32 s49, s2, 2")
    a("s_add_u32 s49, s49, s48")
    a("s_mul_i32 s50, s49, 640")
    a("s_mul_i32 s51, s49, 320")
    a("s_lshl_b32 s52, s48, 10")
    a("s_add_u32 s52, s52, 147456")
    a("v_lshlrev_b32 v19, 2, v0")
    a("v_lshlrev_b32 v32, 1, v0")
    for i in range(3):
        a(f"buffer_load_dword v{1+i}, v19, s[28:31], s50 offen offset:{256*i}")
        a(f"buffer_load_dword v{4+i}, v19, s[32:35], s50 offen offset:{256*i}")
        a(f"buffer_load_ushort v{7+i}, v32, s[36:39], s51 offen offset:{128*i}")
    for r in range(36, 40):
        a(f"v_mov_b32 v{r}, 0")
    a("v_lshlrev_b32 v40, 4, v0")
    a("v_add_u32 v40, s52, v40")
    a("ds_write_b128 v40, v[36:39]")
    a("s_mov_b32 s53, 52429")
    a("s_waitcnt vmcnt(0)")
    n0 = _st[0]
    stamp1(a)
    for i in range(3):
        a(f"v_mul_u32_u24 v{10+i}, s53, v{1+i}")
        a(f"v_lshrrev_b32 v{10+i}, 21, v{10+i}")
        a(f"v_mul_u32_u24 v{13+i}, 40, v{10+i}")
        a(f"v_sub_u32 v{13+i}, v{1+i}, v{13+i}")
        a(f"v_mul_u32_u24 v41, 6, v{1+i}")
        a(f"v_and_b32 v41, -4, v41")
        a(f"buffer_load_dwordx2 v[{20+4*i}:{21+4*i}], v41, s[40:43], 0 offen")
        a(f"v_mul_u32_u24 v41, 6, v{4+i}")
        a(f"v_and_b32 v41, -4, v41")
        a(f"buffer_load_dwordx2 v[{22+4*i}:{23+4*i}], v41, s[40:43], 0 offen")
    a("s_waitcnt lgkmcnt(0)")
    a("v_mov_b32 v41, 1")
    for i in range(3):
        a(f"v_lshlrev_b32 v42, 2, v{10+i}")
        a(f"v_add_u32 v42, s52, v42")
        if i == 2:
            a("v_cmp_gt_u32 vcc, 32, v0")
            a("s_and_saveexec_b64 s[54:55], vcc")
        a(f"ds_add_rtn_u32 v{16+i}, v42, v41")
        if i == 2:
            a("s_mov_b64 exec, s[54:55]")
    a("s_waitcnt vmcnt(0) lgkmcnt(0)")
    stamp1(a)
    a("ds_read_b128 v[44:47], v40")
    for i in range(3):
        pd, ps = 20 + 4 * i, 22 + 4 * i
        R = 48 + 8 * i
        a(f"v_and_b32 v38, 1, v{1+i}")
        a(f"v_lshlrev_b32 v38, 4, v38")
        a(f"v_lshrrev_b64 v[{pd}:{pd+1}], v38, v[{pd}:{pd+1}]")
        a(f"v_and_b32 v38, 1, v{4+i}")
        a(f"v_lshlrev_b32 v38, 4, v38")
        a(f"v_lshrrev_b64 v[{ps}:{ps+1}], v38, v[{ps}:{ps+1}]")
        a(f"v_lshlrev_b32 v32, 16, v{pd}")
        a(f"v_and_b32 v33, 0xffff0000, v{pd}")
        a(f"v_lshlrev_b32 v34, 16, v{pd+1}")
        a(f"v_lshlrev_b32 v35, 16, v{ps}")
        a(f"v_and_b32 v36, 0xffff0000, v{ps}")
        a(f"v_lshlrev_b32 v37, 16, v{ps+1}")
        a(f"v_sub_f32 v32, v32, v35")
        a(f"v_sub_f32 v33, v33, v36")
        a(f"v_sub_f32 v34, v34, v37")
        a(f"v_cvt_pk_bf16_f32 v35, v32, v33")
        a(f"v_cvt_pk_bf16_f32 v36, v34, v34")
        a(f"v_lshlrev_b32 v{R+4}, 16, v35")
        a(f"v_and_b32 v{R+5}, 0xffff0000, v35")
        a(f"v_lshlrev_b32 v{R+6}, 16, v36")
        a(f"v_mul_f32 v32, v{R+4}, v{R+4}")
        a(f"v_mul_f32 v33, v{R+5}, v{R+5}")
        a(f"v_mul_f32 v34, v{R+6}, v{R+6}")
        a(f"v_cvt_pk_bf16_f32 v35, v32, v33")
        a(f"v_cvt_pk_bf16_f32 v36, v34, v34")
        a(f"v_lshlrev_b32 v32, 16, v35")
        a(f"v_and_b32 v33, 0xffff0000, v35")
        a(f"v_lshlrev_b32 v34, 16, v36")
        a(f"v_add_f32 v32, v32, v33")
        a(f"v_add_f32 v32, v32, v34")
        a(f"v_cvt_pk_bf16_f32 v35, v32, v32")
        a(f"v_lshlrev_b32 v{R+1}, 16, v35")
        a(f"v_lshlrev_b32 v{R+0}, 9, v{4+i}")
        a(f"v_lshlrev_b32 v{R+2}, 16, v{7+i}")
        a(f"v_lshlrev_b32 v{R+3}, 10, v{13+i}")
        a(f"v_mov_b32 v{R+7}, 0")
    a("s_waitcnt lgkmcnt(0)")
    a("v_add_u32 v45, v44, v45")
    a("v_add_u32 v46, v45, v46")
    a("v_add_u32 v38, v46, v47")
    a("v_mov_b32 v39, v38")
    for sh in (1, 2, 4, 8):
        a("s_nop 1")
        a(f"v_add_u32_dpp v39, v39, v39 row_shr:{sh} row_mask:0xf bank_mask:0xf bound_ctrl:0")
    a("s_nop 1")
    a("v_add_u32_dpp v39, v39, v39 row_bcast:15 row_mask:0xa bank_mask:0xf")
    a("s_nop 1")
    a("v_add_u32_dpp v39, v39, v39 row_bcast:31 row_mask:0xc bank_mask:0xf")
    a("v_sub_u32 v39, v39, v38")
    a("v_add_u32 v47, v39, v46")
    a("v_add_u32 v46, v39, v45")
    a("v_add_u32 v45, v39, v44")
    a("v_mov_b32 v44, v39")
    a("ds_write_b128 v40, v[44:47]")
    a("v_lshlrev_b32 v41, 4, v0")
    a("s_lshl_b32 s53, s49, 10")
    a(f"s_add_u32 s53, s53, {WS_OFF}")
    a("buffer_store_dwordx4 v[44:47], v41, s[24:27], s53 offen")
    a("s_waitcnt lgkmcnt(0)")
    for i in range(3):
        a(f"v_lshlrev_b32 v42, 2, v{10+i}")
        a(f"v_add_u32 v42, s52, v42")
        a(f"ds_read_b32 v{32+i}, v42")
    a("s_mul_i32 s53, s49, 5120")
    a(f"s_add_u32 s53, s53, {WS_REC}")
    a("s_waitcnt lgkmcnt(0)")
    for i in range(3):
        R = 48 + 8 * i
        a(f"v_add_u32 v{32+i}, v{32+i}, v{16+i}")
        a(f"v_lshlrev_b32 v{32+i}, 5, v{32+i}")
        if i == 2:
            a("v_cmp_gt_u32 vcc, 32, v0")
            a("s_and_saveexec_b64 s[54:55], vcc")
        a(f"buffer_store_dwordx4 v[{R}:{R+3}], v{32+i}, s[24:27], s53 offen")
        a(f"buffer_store_dwordx4 v[{R+4}:{R+7}], v{32+i}, s[24:27], s53 offen offset:16")
        if i == 2:
            a("s_mov_b64 exec, s[54:55]")
    stamp1(a)
    a("s_cmp_lg_u32 s3, 4")
    a("s_cbranch_scc1 k1_nod2")
    dump1(a, 8, n0)
    a.label("k1_nod2")
    a("s_cmp_ge_u32 s2, 64")
    a("s_cbranch_scc1 k1_end")
    a("s_lshl_b32 s53, s2, 2")
    a("s_add_u32 s53, s53, s48")
    a("s_lshr_b32 s54, s53, 4")
    a("s_and_b32 s55, s53, 15")
    a("v_and_b32 v1, 15, v0")
    a("s_lshl_b32 s56, s54, 4")
    a("v_add_u32 v1, s56, v1")
    a("v_lshlrev_b32 v1, 1, v1")
    a("v_lshrrev_b32 v2, 4, v0")
    a("v_lshlrev_b32 v2, 3, v2")
    a("s_lshl_b32 s56, s55, 5")
    a("v_add_u32 v2, s56, v2")
    a("s_cmp_ge_u32 s55, 8")
    a("s_cbranch_scc1 k1_whf_perm")
    for jj in range(8):
        a(f"v_add_u32 v3, {jj}, v2")
        a(f"v_lshlrev_b32 v3, 9, v3")
        a(f"v_add_u32 v3, v3, v1")
        a(f"buffer_load_ushort v{8+jj}, v3, s[44:47], 0 offen")
    a("s_branch k1_whf_pack")
    a.label("k1_whf_perm")
    for jj in range(8):
        a(f"v_add_u32 v3, {jj-256 & 0xffffffff}, v2")
        a(f"v_lshrrev_b32 v4, 6, v3")
        a(f"v_lshlrev_b32 v4, 2, v4")
        a(f"v_and_b32 v5, 3, v3")
        a(f"v_add_u32 v4, v4, v5")
        a(f"v_bfe_u32 v5, v3, 2, 4")
        a(f"v_lshlrev_b32 v5, 3, v5")
        a(f"v_and_b32 v6, 7, v4")
        a(f"v_add_u32 v5, v5, v6")
        a(f"v_lshrrev_b32 v6, 3, v4")
        a(f"v_lshlrev_b32 v6, 7, v6")
        a(f"v_add_u32 v5, v5, v6")
        a(f"v_add_u32 v5, 256, v5")
        a(f"v_lshlrev_b32 v5, 9, v5")
        a(f"v_add_u32 v5, v5, v1")
        a(f"buffer_load_ushort v{8+jj}, v5, s[44:47], 0 offen")
    a.label("k1_whf_pack")
    a("s_waitcnt vmcnt(0)")
    for k in range(4):
        a(f"v_lshl_or_b32 v{20+k}, v{9+2*k}, 16, v{8+2*k}")
    a("v_lshlrev_b32 v3, 4, v0")
    a("s_lshl_b32 s53, s53, 10")
    a(f"s_add_u32 s53, s53, {WS_WHF}")
    a("buffer_store_dwordx4 v[20:23], v3, s[24:27], s53 offen")
    a.label("k1_end")
    a("s_endpgm")

def gen_k2_stub(a):
    a.raw(".globl k2_kernel")
    a.raw(".p2align 8")
    a.raw(".type k2_kernel,@function")
    a.label("k2_kernel")
    a("s_endpgm")

HEADER = """; Kernarg layout for this problem (88 bytes, ptrs only, base s[0:1]):
; @launch kernel=k1_kernel grid=(250,1,1) block=(512,1,1) lds={lds1}
; @launch kernel=k2_kernel grid=(250,1,1) block=(1024,1,1) lds={lds2}
.amdgcn_target "amdgcn-amd-amdhsa--gfx950"
.text
"""

def kd(name, vgpr, sgpr):
    acc = (vgpr + 3) // 4 * 4
    return f"""
.amdhsa_kernel {name}
  .amdhsa_next_free_vgpr {vgpr}
  .amdhsa_next_free_sgpr {sgpr}
  .amdhsa_accum_offset {acc}
  .amdhsa_group_segment_fixed_size 0
  .amdhsa_kernarg_size 88
  .amdhsa_user_sgpr_count 2
  .amdhsa_user_sgpr_kernarg_segment_ptr 1
  .amdhsa_system_sgpr_workgroup_id_x 1
.end_amdhsa_kernel
"""

def main():
    a = Asm()
    gen_k1(a)
    try:
        from gen_k2 import gen_k2, K2_LDS, K2_VGPR
        gen_k2(a)
    except ImportError:
        gen_k2_stub(a); K2_LDS = 0; K2_VGPR = 8
    out = HEADER.format(lds1=147456 + 4096, lds2=K2_LDS) + a.text()
    out += '.section .rodata,"a"\n.p2align 6\n' + kd("k1_kernel", 248, 100) + ".p2align 6\n" + kd("k2_kernel", K2_VGPR, 100)
    open(sys.argv[1] if len(sys.argv) > 1 else "gather_scatter__cheap_equivariant_egnn__graph.s", "w").write(out)

if __name__ == "__main__":
    main()
```
